```python
import torch

def _softmax(x, axis=-1):
    return torch.softmax(x, dim=axis)

def _gelu(x):
    return torch.nn.functional.gelu(x, approximate='tanh')

def _silu(x):
    return torch.nn.functional.silu(x)

def _sigmoid(x):
    return torch.sigmoid(x)

def _layernorm(x, axis=-1, eps=1e-05):
    m = x.mean(dim=axis, keepdim=True)
    v = x.var(dim=axis, keepdim=True, unbiased=False)
    return (x - m) / torch.sqrt(v + eps)

def _scatter_add(tgt, idx, src, axis=0):
    return tgt.clone().index_add_(axis, idx, src)

def _segment_sum(src, seg, n):
    out = torch.zeros((n,) + src.shape[1:], dtype=src.dtype)
    return out.index_add_(0, seg, src)

def _pad(x, pw):
    flat = tuple((v for pair in reversed(pw) for v in pair))
    return torch.nn.functional.pad(x, flat)
kernel_name = 'adaLN_cond__memory_aug_recurrent_mem_tr__dense_activation_gelu__prompt'

def setup_inputs():

    _w = lambda a: (lambda t: t.to(torch.bfloat16) if t.is_floating_point() else t)(torch.as_tensor(a))

    def _A_setup():
        B, S, Dm = (1, 2048, 512)
        H, Dh = (32, 128)
        M, seg = (8, 32)
        seg = min(seg, S)
        S = S // seg * seg
        return {'x': _w((lambda *s: torch.randn(*s, dtype=torch.bfloat16) * 0.05)(B, S, Dm)), 'mem0': _w((lambda *s: torch.randn(*s, dtype=torch.bfloat16) * 0.8)(B, M, Dm)), 'Wq': _w((lambda *s: torch.randn(*s, dtype=torch.bfloat16) * 0.8)(Dm, H, Dh) * Dm ** (-0.5)), 'Wk': _w((lambda *s: torch.randn(*s, dtype=torch.bfloat16) * 0.8)(Dm, H, Dh) * Dm ** (-0.5)), 'Wv': _w((lambda *s: torch.randn(*s, dtype=torch.bfloat16) * 0.8)(Dm, H, Dh) * Dm ** (-0.5)), 'Wo': _w((lambda *s: torch.randn(*s, dtype=torch.bfloat16) * 0.8)(H, Dh, Dm) * (H * Dh) ** (-0.5)), 'seg_len': seg}
    _A_in = _A_setup()

    def _B_setup():
        B, S, D, F = (1, 2048, 512, 1792)
        return {'x': _w((lambda *s: torch.randn(*s, dtype=torch.bfloat16) * 0.05)(B, S, D)), 'w1': _w((lambda *s: torch.randn(*s, dtype=torch.bfloat16) * 0.8)(D, F) * D ** (-0.5)), 'b1': _w((lambda *s: torch.randn(*s, dtype=torch.bfloat16) * 12.8)(F) * 0.01), 'w2': _w((lambda *s: torch.randn(*s, dtype=torch.bfloat16) * 0.4)(F, D) * F ** (-0.5)), 'b2': _w((lambda *s: torch.randn(*s, dtype=torch.bfloat16) * 6.4)(D) * 0.01)}
    _B_in = _B_setup()
    return {'A_x': _A_in['x'], 'A_mem0': _A_in['mem0'], 'A_Wq': _A_in['Wq'], 'A_Wk': _A_in['Wk'], 'A_Wv': _A_in['Wv'], 'A_Wo': _A_in['Wo'], 'A_seg_len': _A_in['seg_len'], 'B_x': _B_in['x'], 'B_w1': _B_in['w1'], 'B_b1': _B_in['b1'], 'B_w2': _B_in['w2'], 'B_b2': _B_in['b2'], 'c': _w((lambda *s: torch.randn(*s, dtype=torch.bfloat16) * 0.1)(1, 512) * 8.0), 'w_mod': _w((lambda *s: torch.randn(*s, dtype=torch.bfloat16) * 0.1)(512, 6 * 512) * 512 ** (-0.5) * 8.0)}

def reference(A_x, A_mem0, A_Wq, A_Wk, A_Wv, A_Wo, A_seg_len, B_x, B_w1, B_b1, B_w2, B_b2, c, w_mod):

    def _A_ref(x, mem0, Wq, Wk, Wv, Wo, seg_len):
        B, S, Dm = x.shape
        H, Dh = (Wq.shape[1], Wq.shape[2])
        M = mem0.shape[1]
        scale = Dh ** (-0.5)
        n_seg = S // seg_len
        L = M + seg_len
        idx = torch.arange(L)
        mask = (idx[:, None] < M) | (idx[:, None] >= idx[None, :])
        mem = mem0
        outs = []
        for s in range(n_seg):
            xs = x[:, s * seg_len:(s + 1) * seg_len, :].clone()
            h = torch.concatenate([mem, xs], axis=1)
            q = torch.einsum('btd,dhe->bhte', h, Wq)
            k = torch.einsum('btd,dhe->bhte', h, Wk)
            v = torch.einsum('btd,dhe->bhte', h, Wv)
            scores = torch.einsum('bhqe,bhke->bhqk', q, k) * scale
            scores = torch.where(mask[None, None], scores, -1000000000.0)
            p = _softmax(scores, axis=-1)
            o = torch.einsum('bhqk,bhke->bhqe', p, v)
            o = torch.einsum('bhte,hed->btd', o, Wo)
            mem = o[:, :M, :].clone()
            outs.append(o[:, M:, :])
        return torch.concatenate(outs, axis=1)

    def _B_ref(x, w1, b1, w2, b2):
        h = torch.einsum('bsd,df->bsf', x, w1) + b1
        h = _gelu(h)
        return torch.einsum('bsf,fd->bsd', h, w2) + b2
    x = A_x
    mod = (_silu(c) @ w_mod).reshape(c.shape[0], 6, 1, -1)
    sa, ca, ga, sb, cb, gb = (mod[:, 0].clone(), mod[:, 1].clone(), mod[:, 2].clone(), mod[:, 3].clone(), mod[:, 4].clone(), mod[:, 5].clone())
    h = _layernorm(x, axis=-1) * (1 + ca) + sa
    x = x + ga * _A_ref(h, A_mem0, A_Wq, A_Wk, A_Wv, A_Wo, A_seg_len)
    h = _layernorm(x, axis=-1) * (1 + cb) + sb
    x = x + gb * _B_ref(h, B_w1, B_b1, B_w2, B_b2)
    return x
```

```python
import re

REG_RE = re.compile(r'^(-?)(?:abs\()?([vas])(?:(\d+)|\[(\d+):(\d+)\])\)?$')

def parse_reg(tok):
    tok = tok.strip()
    if tok in ('vcc', 'exec'):
        return ('s', [tok + '_lo', tok + '_hi'])
    if tok in ('vcc_lo', 'vcc_hi', 'exec_lo', 'exec_hi', 'm0', 'scc'):
        return ('s', [tok])
    m = REG_RE.match(tok)
    if not m:
        return None
    k = m.group(2)
    if m.group(3) is not None:
        lo = hi = int(m.group(3))
    else:
        lo, hi = int(m.group(4)), int(m.group(5))
    idx = list(range(lo, hi + 1))
    if k == 'a':
        return ('v', [256 + i for i in idx])
    return (k, idx)

TRANS = ('v_exp_f32', 'v_log_f32', 'v_rcp_f32', 'v_rsq_f32', 'v_sqrt_f32', 'v_sin_f32', 'v_cos_f32')

class Inst:
    __slots__ = ('text', 'op', 'kind', 'vw', 'vr', 'sw', 'sr', 'passes', 'srcC', 'ab', 'wide_st', 'stdata', 'lds_dma', 'dpp', 'nop', 'label', 'target', 'addr_v')
    def __init__(self, text):
        self.text = text
        self.vw = set(); self.vr = set(); self.sw = set(); self.sr = set()
        self.passes = 0; self.srcC = set(); self.ab = set(); self.wide_st = False; self.stdata = set()
        self.lds_dma = False; self.dpp = False; self.nop = 0; self.label = None; self.target = None
        t = text.split(';')[0].strip()
        if t.endswith(':'):
            self.kind = 'label'; self.op = ''; self.label = t[:-1]; return
        if t.startswith('.') or not t:
            self.kind = 'dir'; self.op = ''; return
        parts = t.split(None, 1)
        op = parts[0]; self.op = op
        rest = parts[1] if len(parts) > 1 else ''
        ops = []
        cur = ''; depth = 0
        for ch in rest:
            if ch in '[(': depth += 1
            if ch in '])': depth -= 1
            if ch == ',' and depth == 0:
                ops.append(cur.strip()); cur = ''
            else:
                cur += ch
        if cur.strip(): ops.append(cur.strip())
        mods = ''
        if ops:
            last = ops[-1].split(None, 1)
            ops[-1] = last[0]
            mods = last[1] if len(last) > 1 else ''
        R = [parse_reg(o) for o in ops]
        def rd(r):
            if r: (self.vr if r[0] == 'v' else self.sr).update(r[1])
        def wr(r):
            if r: (self.vw if r[0] == 'v' else self.sw).update(r[1])
        if op.startswith('v_mfma') or op.startswith('v_smfmac'):
            self.kind = 'mfma'
            self.passes = 8 if '32x32' in op else 4
            wr(R[0]); rd(R[1]); rd(R[2])
            self.ab = set(R[1][1]) | set(R[2][1])
            if op.startswith('v_smfmac'):
                rd(R[0]); self.srcC = set(R[0][1]); rd(R[3]); self.ab |= set(R[3][1])
            else:
                if R[3]: rd(R[3]); self.srcC = set(R[3][1])
        elif op.startswith('v_'):
            self.kind = 'valu'
            if any(op.startswith(x) for x in TRANS): self.kind = 'trans'
            if 'dpp' in op or 'row_' in mods or 'quad_perm' in mods: self.dpp = True
            self.sr.update(['exec_lo', 'exec_hi'])
            if op.startswith('v_cmp'):
                wr(R[0]); [rd(r) for r in R[1:]]
                assert not op.startswith('v_cmpx')
            elif op.startswith('v_permlane') and 'swap' in op:
                self.kind = 'permlane'
                wr(R[0]); wr(R[1]); rd(R[0]); rd(R[1])
            elif op.startswith('v_readfirstlane') or op.startswith('v_readlane'):
                self.kind = 'readlane'
                wr(R[0]); [rd(r) for r in R[1:]]
            elif op.startswith(('v_add_co', 'v_sub_co', 'v_addc_co', 'v_subb_co')):
                wr(R[0]); wr(R[1]); [rd(r) for r in R[2:]]
            else:
                wr(R[0]); [rd(r) for r in R[1:]]
                if op.startswith(('v_fmac', 'v_pk_fmac', 'v_dot2c', 'v_writelane')) or self.dpp: rd(R[0])
                if op.startswith('v_cndmask') and len(R) == 3: self.sr.update(['vcc_lo', 'vcc_hi'])
        elif op.startswith('ds_'):
            if op.startswith(('ds_read', 'ds_bpermute', 'ds_permute', 'ds_swizzle')) or '_rtn' in op:
                self.kind = 'ds_rd'; wr(R[0]); [rd(r) for r in R[1:]]
            else:
                self.kind = 'ds_wr'; [rd(r) for r in R]
        elif op.startswith(('buffer_', 'global_')):
            if op in ('buffer_wbl2', 'buffer_inv'):
                self.kind = 'vmem_st'
            elif ' lds' in (' ' + mods) or 'load_lds' in op:
                self.kind = 'vmem_ld'; self.lds_dma = True; [rd(r) for r in R]; self.sr.add('m0')
            elif 'load' in op:
                self.kind = 'vmem_ld'; wr(R[0]); [rd(r) for r in R[1:]]
            elif 'atomic' in op:
                if 'sc0' in mods:
                    self.kind = 'vmem_ld'; wr(R[0]); [rd(r) for r in R]
                else:
                    self.kind = 'vmem_st'; [rd(r) for r in R]
            else:
                self.kind = 'vmem_st'; [rd(r) for r in R]
                d = R[0] if op.startswith('buffer') else R[1]
                self.stdata = set(d[1])
                if 'x4' in op or 'x3' in op: self.wide_st = True
        elif op == 's_nop':
            self.kind = 'nop'; self.nop = int(ops[0], 0) + 1
        elif op == 's_waitcnt':
            self.kind = 'wait'
        elif op.startswith('s_cbranch') or op == 's_branch':
            self.kind = 'branch'; self.target = ops[0]
        elif op.startswith(('s_load', 's_buffer_load', 's_memtime', 's_memrealtime')):
            self.kind = 'smem'; wr(R[0]); [rd(r) for r in R[1:]]
        elif op.startswith('s_'):
            self.kind = 'salu'
            if op.startswith(('s_cmp', 's_bitcmp')):
                [rd(r) for r in R]
            elif op in ('s_barrier', 's_endpgm', 's_sleep', 's_setprio'):
                pass
            else:
                wr(R[0]); [rd(r) for r in R[1:]]
                if 'saveexec' in op: self.sw.update(['exec_lo', 'exec_hi'])
        else:
            raise ValueError('unknown op ' + text)

    def is_valu(self):
        return self.kind in ('valu', 'trans', 'permlane', 'readlane')

def need(prod, cons):
    n = 0
    if prod.is_valu():
        if cons.kind == 'mfma' and prod.vw & cons.vr: n = max(n, 2)
        if cons.kind == 'permlane' and prod.vw & cons.vr: n = max(n, 2)
        if cons.dpp and prod.vw & cons.vr: n = max(n, 2)
        if cons.kind == 'readlane' and prod.vw & cons.vr: n = max(n, 1)
        if prod.kind == 'trans' and cons.is_valu() and cons.kind != 'trans' and prod.vw & (cons.vr | cons.vw): n = max(n, 1)
        if prod.kind == 'trans' and cons.kind in ('ds_wr', 'vmem_st', 'ds_rd', 'vmem_ld') and prod.vw & cons.vr: n = max(n, 1)
        sw = prod.sw
        if sw:
            if cons.is_valu() and sw & (cons.sr - {'exec_lo', 'exec_hi'}): n = max(n, 4 if cons.kind == 'readlane' else 2)
            if cons.kind in ('vmem_ld', 'vmem_st') and sw & cons.sr: n = max(n, 5)
    if prod.kind == 'mfma':
        p4 = prod.passes == 4
        if cons.kind == 'mfma':
            if prod.vw & cons.ab: n = max(n, 8 if p4 else 12)
            if prod.vw & cons.srcC:
                if not (cons.srcC == prod.vw and cons.op == prod.op): n = max(n, 8 if p4 else 12)
            elif prod.vw & cons.vw and not (cons.vw == prod.vw):
                n = max(n, 8 if p4 else 12)
            elif prod.vw & cons.vw:
                n = max(n, 6 if p4 else 10)
        elif cons.kind in ('valu', 'trans', 'permlane', 'readlane', 'ds_rd', 'ds_wr', 'vmem_ld', 'vmem_st'):
            if prod.vw & (cons.vr | cons.vw): n = max(n, 8 if p4 else 12)
            if cons.is_valu() and prod.srcC & cons.vw: n = max(n, 3 if p4 else 7)
    if prod.kind == 'vmem_st' and prod.wide_st and prod.stdata & cons.vw:
        n = max(n, 2)
    if prod.kind == 'salu' and 'm0' in prod.sw and cons.lds_dma: n = max(n, 1)
    return n

MAXD = 12

class Prog:
    def __init__(self):
        self.ins = []
    def __call__(self, text):
        for line in text.split('\n'):
            if line.strip():
                self.ins.append(Inst(line.strip()))
    def label(self, l): self(l + ':')
    def comment(self, c): self.ins.append(Inst('; ' + c))

    def fix_hazards(self):
        ins = self.ins
        total = 0
        def maps():
            labels = {x.label: i for i, x in enumerate(ins) if x.kind == 'label'}
            preds = {}
            for i, x in enumerate(ins):
                if x.kind == 'branch' and x.target in labels:
                    preds.setdefault(labels[x.target], []).append(i)
            return preds
        preds = maps()
        def paths(j, path, cnt, via_edge):
            while j >= 0 and cnt <= MAXD:
                x = ins[j]
                if x.kind == 'label':
                    for p in preds.get(j, []):
                        yield from paths(p, path, cnt, True)
                    j -= 1; via_edge = False; continue
                if x.kind == 'dir': j -= 1; continue
                if x.op in ('s_branch', 's_endpgm') and not via_edge: break
                via_edge = False
                path = [x] + path
                cnt += x.nop if x.kind == 'nop' else 1
                j -= 1
            yield path
        def deficit(path, c):
            worst = 0
            seq = path + [c]
            for k, p in enumerate(path):
                n = need(p, c)
                if not n: continue
                t = 0; lastm = (0, p.passes) if p.kind == 'mfma' else None
                paced = False
                prev = p
                for x in seq[k + 1:]:
                    t += 4 * (prev.nop if prev.kind == 'nop' else 1)
                    if x.kind == 'mfma':
                        if lastm and lastm[0] + 4 * lastm[1] > t:
                            t = lastm[0] + 4 * lastm[1]; paced = True
                        lastm = (t, x.passes)
                    prev = x
                req = 4 * (n + 1) + (4 if paced else 0)
                if t < req: worst = max(worst, (req - t + 3) // 4)
            return worst
        i = 0
        while i < len(ins):
            c = ins[i]
            if c.kind in ('label', 'dir', 'nop', 'wait', 'branch', 'salu', 'smem'):
                i += 1; continue
            worst = 0
            for path in paths(i - 1, [], 0, False):
                worst = max(worst, deficit(path, c))
            if worst:
                ins.insert(i, Inst(f's_nop {worst-1}'))
                total += 1
                preds = maps()
                continue
            i += 1
        return total

    def text(self):
        out = []
        for x in self.ins:
            if x.kind == 'label': out.append(x.text)
            else: out.append('  ' + x.text)
        return '\n'.join(out) + '\n'

WAIT_RE = re.compile(r'(vmcnt|lgkmcnt)\((\d+)\)')

def check_waits(trace, name=''):
    vm = []
    lg = []
    errs = []
    for k, x in enumerate(trace):
        if x.kind == 'wait':
            for c, n in WAIT_RE.findall(x.text):
                n = int(n)
                if c == 'vmcnt':
                    while len(vm) > n: vm.pop(0)
                else:
                    if n == 0: lg.clear()
                    else:
                        while sum(1 for e in lg if not e[1]) > n:
                            k0 = next(i for i, e in enumerate(lg) if not e[1]); lg.pop(k0)
            continue
        touched_v = x.vr | x.vw
        touched_s = x.sr | x.sw
        for q, nm in ((vm, 'vm'), (lg, 'lgkm')):
            for e in q:
                if e[0] & touched_v and not (x.kind in ('vmem_ld','ds_rd') and not (e[0] & x.vr) and nm == ('vm' if x.kind=='vmem_ld' else 'lgkm')):
                    errs.append(f'{name}: [{k}] "{x.text}" touches regs of outstanding {nm} op "{e[2]}"')
                if e[1] and e[3] & touched_s:
                    errs.append(f'{name}: [{k}] "{x.text}" touches sregs of outstanding smem "{e[2]}"')
        if x.kind in ('vmem_ld', 'vmem_st'):
            vm.append((set(x.vw), False, x.text, set()))
            if len(vm) > 63: errs.append(f'{name}: [{k}] more than 63 vmem outstanding')
        elif x.kind in ('ds_rd', 'ds_wr'):
            lg.append((set(x.vw), False, x.text, set()))
        elif x.kind == 'smem':
            lg.append((set(), True, x.text, set(x.sw)))
    return errs

def make_trace(ins, start_label, loops=3, taken=(), stop=()):
    idx = {x.label: i for i, x in enumerate(ins) if x.kind == 'label'}
    i = idx[start_label] if start_label is not None else 0
    out = []; visits = 0
    while i < len(ins) and len(out) < 200000:
        x = ins[i]
        if x.kind == 'label':
            if x.label == start_label:
                visits += 1
                if visits > loops: break
            if x.label in stop: break
        out.append(x)
        if x.op == 's_endpgm': break
        if x.kind == 'branch' and (x.op == 's_branch' or x.target in taken):
            i = idx[x.target]; continue
        i += 1
    return out
```

```python
from common import *
import common

S_WS, S_WQ, S_WK, S_WV, S_WO, S_M0, S_DBG = 4, 8, 12, 16, 20, 24, 28
sH, sW, sS, sB = 32, 33, 34, 35
sM8 = 36
sC = 38
sT0, sT1, sT2, sT3, sT4 = 40, 41, 42, 43, 44
sPst, sMld, sPld, sPld2, sMstO, sExp, sSpin, sMrs, sPB = 45, 46, 47, 48, 49, 50, 51, 52, 53
sPP = 54
sH8, sPiece = 56, 57
sRdy, sFk, sFm = 60, 61, 62
sTS = 72
def srd(n): return f's[{n}:{n+3}]'
vL16, vHi, vIdx, vQw, vKw, vQr, vKr, vOw, vOr, vWo0, vWo1, vPst, vMst, vKV = range(1, 15)
vT0, vT1 = 0, 15
ONES, SEL, PZ = 16, 20, 24
MF = 28
def MFq(Q): return MF + 16 * (Q & 1) + 4 * (Q >> 1)
MFA, MFB = MF, MF + 16
Q0, Q1, K0, K1, V0, V1 = 60, 64, 68, 72, 76, 80
QOP = 84
X0 = 100
WOR = 112
def v(a, n=1): return f'v{a}' if n == 1 else f'v[{a}:{a+n-1}]'
def a_(a, n=1): return f'a{a}' if n == 1 else f'a[{a}:{a+n-1}]'
def Wq(t, i): return a_((t * 8 + i) * 8, 8)
def Wk(t, i): return a_(128 + (t * 8 + i) * 8, 8)
def Wv(t, i): return v(128 + (t * 8 + i) * 8, 8)
def S(acc, A, B): return f'v_smfmac_f32_16x16x64_bf16 {v(acc,4)}, {v(A,4)}, {B}, {v(vIdx)}'
def M32(D, A, B, C): return f'v_mfma_f32_16x16x32_bf16 {v(D,4)}, {v(A,4)}, {v(B,4)}, {C if C=="0" else v(C,4)}'
def M16(D, A, B, C): return f'v_mfma_f32_16x16x16_bf16 {v(D,4)}, {v(A,2)}, {v(B,2)}, {C if C=="0" else v(C,4)}'
import os
LAST = int(os.environ.get('LAST', 63))
NORESET = int(os.environ.get('NORESET', 0))
ODD_SLEEP = int(os.environ.get('ODD_SLEEP', 5))
NOEARLY = int(os.environ.get('NOEARLY', 0))
SINGLE = int(os.environ.get('SINGLE', 0))
OUT = os.environ.get('OUT', 'chain_test')
EV_SLEEP = int(os.environ.get('EV_SLEEP', 1))
SOLO = int(os.environ.get('SOLO', 0))
SENT = 0 if SOLO else -1
SKIP = os.environ.get('SKIP', '').split(',')
BCHK = int(os.environ.get('BCHK', 13))
KBAR = int(os.environ.get('KBAR', 43))


tWsrc, tTr, tTr2, tTrO, tTrO2, tM0 = 60, 61, 62, 63, 64, 65
def lane_consts(p):
    l, n, g, t, g1, g0, t7, r, c, u = range(66, 76)
    p(f'v_and_b32 v{l}, 63, v0')
    p(f'v_and_b32 v{n}, 15, v0')
    p(f'v_lshrrev_b32 v{g}, 4, v{l}')
    p(f'v_lshlrev_b32 v{vL16}, 4, v{l}')
    p(f'v_add_u32 v{vHi}, {L_KVB}, v{vL16}')
    p(f'v_and_b32 v{t}, 1, v0')
    p(f'v_cmp_ne_u32 vcc, 0, v{t}')
    p(f'v_mov_b32 v{vIdx}, 0x4444')
    p(f'v_mov_b32 v{u}, 0xeeee')
    p(f'v_cndmask_b32 v{vIdx}, v{vIdx}, v{u}, vcc')
    p(f'v_lshrrev_b32 v{g1}, 1, v{g}')
    p(f'v_and_b32 v{g0}, 1, v{g}')
    p(f'v_and_b32 v{t7}, 7, v0')
    p(f'v_lshrrev_b32 v{r}, 2, v{n}')
    p(f'v_and_b32 v{c}, 3, v0')
    p(f's_lshl_b32 s{sT0}, s{sW}, 9')
    p(f'v_lshlrev_b32 v{t}, 4, v{n}')
    p(f'v_lshl_add_u32 v{t}, v{g}, 2, v{t}')
    p(f'v_add_u32 v{t}, s{sT0}, v{t}')
    p(f'v_add_u32 v{vQw}, {L_QX}, v{t}')
    p(f'v_lshlrev_b32 v{t}, 1, v{t}')
    p(f'v_add_u32 v{vKw}, {L_KX}, v{t}')
    p(f'v_lshl_add_u32 v{t}, v{g}, 3, v{r}')
    p(f'v_and_b32 v{u}, 1, v{c}')
    p(f'v_lshlrev_b32 v{u}, 3, v{u}')
    p(f'v_lshl_add_u32 v{u}, v{t}, 4, v{u}')
    p(f'v_add_u32 v{vQr}, {L_QX}, v{u}')
    p(f'v_lshlrev_b32 v{u}, 3, v{c}')
    p(f'v_lshl_add_u32 v{u}, v{t}, 5, v{u}')
    p(f'v_add_u32 v{vKr}, {L_KX}, v{u}')
    p(f'v_mul_u32_u24 v{u}, 272, v{t7}')
    p(f's_lshl_b32 s{sT0}, s{sW}, 6')
    p(f's_add_u32 s{sT0}, s{sT0}, {L_OX}')
    p(f'v_lshl_add_u32 v{t}, v{g}, 3, v{u}')
    p(f'v_add_u32 v{vOw}, s{sT0}, v{t}')
    p(f'v_lshrrev_b32 v{t}, 1, v{n}')
    p(f'v_mul_u32_u24 v{u}, 272, v{t}')
    p(f'v_lshl_add_u32 v{u}, v{g}, 5, v{u}')
    p(f'v_and_b32 v{t}, 1, v0')
    p(f'v_lshl_add_u32 v{u}, v{t}, 4, v{u}')
    p(f'v_add_u32 v{vOr}, {L_OX}, v{u}')
    p(f'v_lshrrev_b32 v{u}, 1, v{n}')
    p(f'v_lshlrev_b32 v{u}, 10, v{u}')
    p(f'v_lshl_add_u32 v{u}, v{g}, 5, v{u}')
    p(f'v_lshl_add_u32 v{tM0}, v{t}, 4, v{u}')
    p(f's_mul_i32 s{sT0}, s{sW}, 14336')
    p(f'v_add_u32 v{vWo0}, s{sT0}, v{vL16}')
    p(f'v_add_u32 v{vWo1}, {L_WO1}, v{vWo0}')
    p(f'v_lshlrev_b32 v{t}, 13, v{g}')
    p(f'v_lshl_add_u32 v{vPst}, v{n}, 4, v{t}')
    p(f'v_mov_b32 v{tWsrc}, v{vPst}')
    p(f'v_lshrrev_b32 v{t}, 1, v{t7}')
    p(f'v_lshlrev_b32 v{t}, 8, v{t}')
    p(f'v_and_b32 v{u}, 1, v0')
    p(f'v_lshl_add_u32 v{t}, v{u}, 5, v{t}')
    p(f'v_lshl_add_u32 v{t}, v{g1}, 4, v{t}')
    p(f'v_lshl_add_u32 v{vMst}, v{g0}, 3, v{t}')
    p(f'v_lshrrev_b32 v{t}, 1, v{r}')
    p(f'v_lshlrev_b32 v{t}, 3, v{t}')
    p(f'v_lshl_add_u32 v{t}, v{g1}, 4, v{t}')
    p(f'v_lshl_add_u32 v{t}, v{g0}, 2, v{t}')
    p(f'v_and_b32 v{u}, 1, v{r}')
    p(f'v_add_u32 v{t}, v{t}, v{u}')
    p(f's_lshl_b32 s{sT0}, s{sW}, 6')
    p(f'v_lshlrev_b32 v{u}, 8, v{t}')
    p(f'v_lshl_add_u32 v{u}, v{c}, 3, v{u}')
    p(f'v_add_u32 v{tTr}, s{sT0}, v{u}')
    p(f'v_add_u32 v{tTr2}, 0x10000, v{tTr}')
    p(f's_lshl_b32 s{sT0}, s{sW}, 8')
    p(f'v_lshlrev_b32 v{u}, 10, v{t}')
    p(f'v_lshl_add_u32 v{u}, v{c}, 3, v{u}')
    p(f'v_add_u32 v{tTrO}, s{sT0}, v{u}')
    p(f'v_add_u32 v{tTrO2}, 0x10000, v{tTrO}')
    for k in range(4): p(f'v_mov_b32 v{ONES+k}, 0x3f803f80')
    for k in range(4): p(f'v_mov_b32 v{PZ+k}, 0')
    p(f'v_mov_b32 v{t}, 0x3f80')
    p(f'v_mov_b32 v{u}, 0x3f800000')
    for k in range(4):
        p(f'v_mov_b32 v{SEL+k}, 0')
        p(f'v_cmp_eq_u32 vcc, {2*k}, v{t7}')
        p(f'v_cndmask_b32 v{SEL+k}, v{SEL+k}, v{t}, vcc')
        p(f'v_cmp_eq_u32 vcc, {2*k+1}, v{t7}')
        p(f'v_cndmask_b32 v{SEL+k}, v{SEL+k}, v{u}, vcc')

def issue_chunk(p, c):
    slot = c % 8
    p(f's_lshl_b32 s{sT0}, s{sW}, 12')
    p(f's_add_u32 s{sT0}, s{sT0}, {slot*16384}')
    p(f's_mov_b32 m0, s{sT0}')
    if c < 24:
        mi, i = c // 8, c % 8
        Sd = [S_WQ, S_WK, S_WV][mi]
        p(f's_lshl_b32 s{sT1}, s{sW}, 17')
        p(f's_add_u32 s{sT1}, s{sT1}, s{sH8}')
        p(f's_add_u32 s{sT1}, s{sT1}, {64*i*8192}')
        for zz in range(4):
            p(f'buffer_load_dwordx4 v{tWsrc}, {srd(Sd)}, s{sT1} offen offset:{zz*1024} lds')
            if zz < 3: p(f's_add_u32 s{sT1}, s{sT1}, {4*8192-1024}')
    else:
        b = c - 24
        p(f's_lshl_b32 s{sT1}, s{sH}, 17')
        p(f's_lshl_b32 s{sT2}, s{sW}, 12')
        p(f's_add_u32 s{sT1}, s{sT1}, s{sT2}')
        p(f's_add_u32 s{sT1}, s{sT1}, {b*16384}')
        for zz in range(4):
            p(f'buffer_load_dwordx4 v{vL16}, {srd(S_WO)}, s{sT1} offen offset:{zz*1024} lds')

def load_weights(p):
    for c in range(7): issue_chunk(p, c)
    for c in range(24):
        issued = min(c + 6, 31)
        p(f's_waitcnt vmcnt({(issued - c) * 4})')
        p('s_barrier')
        if c + 7 <= 31: issue_chunk(p, c + 7)
        mi, i = c // 8, c % 8
        slot = c % 8
        base = tTr if slot < 4 else tTr2
        for t in range(2):
            for u in range(4):
                imm = (slot % 4) * 16384 + ((u >> 1) * 32 + (u & 1) * 2) * 256 + 32 * t
                r0 = (t * 8 + i) * 8 + 2 * u
                dst = [a_(r0, 2), a_(128 + r0, 2), v(128 + r0, 2)][mi]
                p(f'ds_read_b64_tr_b16 {dst}, v{base} offset:{imm}')
        p('s_waitcnt lgkmcnt(0)')
    p('s_barrier')
    issue_chunk(p, 31)
    p('s_waitcnt vmcnt(0)')
    p('s_barrier')
    buf = [28, 36, 44, 52, 84, 92, 100]
    for ks in range(2):
        base = tTrO + ks
        for i in range(8):
            for u in range(4):
                imm = ((u >> 1) * 32 + (u & 1) * 2) * 1024 + 32 * i
                dst = WOR + ks * 8 + 2 * u if i == 0 else buf[i - 1] + 2 * u
                p(f'ds_read_b64_tr_b16 {v(dst,2)}, v{base} offset:{imm}')
            if i % 2 == 1: p('s_waitcnt lgkmcnt(0)')
        p('s_barrier')
        for i in range(1, 8):
            for hf in range(2):
                p(f'ds_write_b128 v{vWo0 + ks}, {v(buf[i-1] + 4*hf, 4)} offset:{(i-1)*2048 + hf*1024}')
        p('s_waitcnt lgkmcnt(0)')
        p('s_barrier')

def kv_dma(s_seg_reg, quarters):
    L = []
    L.append(f's_lshl_b32 s{sT1}, s{s_seg_reg}, 19')
    L.append(f's_lshl_b32 s{sT0}, s{sH}, 14')
    L.append(f's_add_u32 s{sT1}, s{sT1}, s{sT0}')
    L.append(f's_and_b32 s{sT0}, s{s_seg_reg}, 1')
    L.append(f's_lshl_b32 s{sT0}, s{sT0}, 14')
    L.append(f's_add_u32 s{sT0}, s{sT0}, {L_KVB + quarters[0]*4096}')
    L.append(f's_add_u32 s{sT1}, s{sT1}, {WS_KVF + quarters[0]*4096}')
    for k, q in enumerate(quarters):
        L.append(f's_mov_b32 m0, s{sT0}')
        L.append('s_nop 0')
        for zz in range(4):
            L.append(f'buffer_load_dwordx4 v{vL16}, {srd(S_WS)}, s{sT1} offen offset:{zz*1024} sc1 lds')
        if k + 1 < len(quarters):
            L.append(f's_add_u32 s{sT0}, s{sT0}, 4096')
            L.append(f's_add_u32 s{sT1}, s{sT1}, 4096')
    return L

def post(acc, out):
    return [f'v_add_f32 v{acc}, v{acc}, v{acc+1}', f'v_add_f32 v{acc+2}, v{acc+2}, v{acc+3}', f'v_cvt_pk_bf16_f32 v{out}, v{acc}, v{acc+2}']

def weave(p, mf, *streams):
    st = [[a, b, list(c)] for a, b, c in streams]
    for k, m in enumerate(mf):
        p(m)
        for s_ in st:
            if k >= s_[0]:
                for _ in range(s_[1]):
                    if s_[2]: p(s_[2].pop(0))
    for s_ in st:
        for x in s_[2]: p(x)

def stamp(p, k, on):
    if on: p(f's_memtime s[{sTS+2*k}:{sTS+2*k+1}]')

def chk(p, R):
    p(f'v_max3_u32 v{vT0}, v{R}, v{R+1}, v{R+2}')
    p(f'v_max_u32 v{vT0}, v{vT0}, v{R+3}')
    p(f'v_cmp_eq_u32 vcc, -1, v{vT0}')


def kv_ready(p):
    u = uid()
    p(f's_cmp_gt_u32 s{sRdy}, s{sT3}')
    p(f's_cbranch_scc1 L_kr{u}')
    p(f'v_lshrrev_b32 v{vT1}, 2, v{vL16}')
    p.label(f'L_krl{u}')
    p(f'buffer_load_dword v{vT0}, v{vT1}, {srd(S_WS)}, s{sFk} offen sc1')
    spin(p)
    p('s_waitcnt vmcnt(0)')
    p(f'v_cmp_eq_u32 vcc, 0, v{vT0}')
    p(f's_ff1_i32_b64 s{sRdy}, vcc')
    p(f's_min_u32 s{sRdy}, s{sRdy}, 64')
    p(f's_cmp_gt_u32 s{sRdy}, s{sT3}')
    p(f's_cbranch_scc0 L_krl{u}')
    p.label(f'L_kr{u}')

def step_body(p, w, st, prof):
    tag = f'w{w}{"s" if st else "f"}'
    QA, QB = 2 * w, 2 * w + 1
    def mload(Q): return f'buffer_load_dwordx4 {v(MFq(Q),4)}, v{vL16}, {srd(S_WS)}, s{sMld} offen offset:{(Q&1)*1024} sc1'
    def mwr(Q): return f'ds_write_b128 v{vHi}, {v(MFq(Q),4)} offset:{L_MX - L_KVB + Q*1024}'
    def mrd(Q): return f'ds_read_b128 {v(MFq(Q),4)}, v{vHi} offset:{L_MX - L_KVB + Q*1024}'
    p.label(f'L_step_{tag}')
    stamp(p, 0, prof)
    if prof: p(f's_memrealtime s[90:91]')
    PA2 = QOP
    order = [QA] + [q for q in (0, 2, 4, 6) if q != QA]
    orderB = [QB] + [q for q in (1, 3, 5, 7) if q != QB]
    bb = []
    for Q in order:
        bb += [S(Q0, MFq(Q), Wq(0, Q)), S(Q1, MFq(Q), Wq(1, Q)), S(K0, MFq(Q), Wk(0, Q)), S(K1, MFq(Q), Wk(1, Q)), S(V0, MFq(Q), Wv(0, Q)), S(V1, MFq(Q), Wv(1, Q))]
    for (a0, a1, W) in ((Q0, Q1, Wq), (K0, K1, Wk), (V0, V1, Wv)):
        for Q in orderB: bb += [S(a0, MFq(Q), W(0, Q)), S(a1, MFq(Q), W(1, Q))]
    KF0 = [MFA + 4 * k for k in range(4)]
    KF1 = [X0, X0 + 4, X0 + 8, Q1]
    KOP = [MFq(q) for q in orderB]
    S0, S1, S2 = K0, K1, Q0
    bb += [M32(S0, KF0[k], QOP + 4 * k, '0' if k == 0 else S0) for k in range(4)]
    bb += [M32(S1, KF1[k], QOP + 4 * k, '0' if k == 0 else S1) for k in range(4)]
    bb += [M32(S2, KOP[k], QOP + 4 * k, '0' if k == 0 else S2) for k in range(4)]
    F = {k: [] for k in range(-1, len(bb))}
    def put(k, L, per=1):
        L = list(L)
        while L:
            F[k] += L[:per]; L = L[per:]; k += 1
    mloadB2 = f'buffer_load_dwordx4 {v(PA2,4)}, v{vL16}, {srd(S_WS)}, s{sMld} offen offset:1024 sc1'
    F[5] += ['s_waitcnt lgkmcnt(0)']
    F[6] += [f's_cmp_lg_u32 s{sB}, 0', f's_cbranch_scc1 L_nob2_{tag}', mloadB2, f'L_nob2_{tag}:']
    F[BCHK] += [f's_cmp_lg_u32 s{sB}, 0', f's_cbranch_scc1 L_bok0_{tag}', 's_waitcnt vmcnt(1)',
              f'v_max3_u32 v{vT0}, v{MFq(QB)}, v{MFq(QB)+1}, v{MFq(QB)+2}', f'v_max_u32 v{vT0}, v{vT0}, v{MFq(QB)+3}', f'v_cmp_eq_u32 vcc, -1, v{vT0}',
              f's_cbranch_vccnz L_bok0_{tag}', mwr(QB), f's_mov_b32 s{sB}, 1', f'L_bok0_{tag}:']
    F[19] += [f's_cmp_lg_u32 s{sB}, 0', f's_cbranch_scc1 L_bok1_{tag}', f'L_bloop_{tag}:', 's_waitcnt vmcnt(0)',
              f'v_max3_u32 v{vT0}, v{PA2}, v{PA2+1}, v{PA2+2}', f'v_max_u32 v{vT0}, v{vT0}, v{PA2+3}', f'v_cmp_eq_u32 vcc, -1, v{vT0}',
              f's_cbranch_vccz L_bgot_{tag}', mloadB2, f's_add_u32 s{sSpin}, s{sSpin}, 1', f's_cmp_gt_u32 s{sSpin}, {SPIN_MAX}', 's_cbranch_scc1 L_end',
              f's_branch L_bloop_{tag}', f'L_bgot_{tag}:',
              f'ds_write_b128 v{vHi}, {v(PA2,4)} offset:{L_MX - L_KVB + QB*1024}',
              f'v_mov_b64 {v(MFq(QB),2)}, {v(PA2,2)}', f'v_mov_b64 {v(MFq(QB)+2,2)}, {v(PA2+2,2)}', f'L_bok1_{tag}:',
              f's_cmp_eq_u32 s{sS}, 0', f's_cbranch_scc1 L_haveB_{tag}', 's_waitcnt vmcnt(0) lgkmcnt(0)', 's_barrier'] + \
             [mrd(Q) for Q in orderB[1:]] + [f'L_haveB_{tag}:']
    if prof: F[19].append(f's_memtime s[{sTS+2}:{sTS+3}]')
    sc = [f's_and_b32 s{sT3}, s{sS}, 1', f's_lshl_b32 s{sT3}, s{sT3}, 14', f'v_add_u32 v{vKV}, s{sT3}, v{vHi}',
          f's_add_u32 s{sT2}, s{sS}, 1', f's_cmp_eq_u32 s{sS}, 63', f's_cselect_b32 s{sT2}, 62, s{sT2}']
    dma = kv_dma(sT2, (w,))
    ex = [f's_lshl_b32 s{sExp}, s{sS}, 5', f's_add_u32 s{sExp}, s{sExp}, s{sH}', f's_lshl_b32 s{sT3}, s{sExp}, 11',
          f's_add_u32 s{sT3}, s{sT3}, {WS_VM + w*512}', f's_lshl_b32 s{sT4}, s{sExp}, 12', f's_add_u32 s{sT4}, s{sT4}, {WS_KM + w*1024}']
    put(7, sc, 1)
    put(14, dma[:8], 2)
    put(20, ex, 2)
    if w == 3:
        F[23] += [f'buffer_store_dword v{ONES}, off, {srd(S_WS)}, s{sFm} sc1', f's_add_u32 s{sFm}, s{sFm}, 4']
    F[25] += ['s_waitcnt lgkmcnt(0)']
    kf0 = [f'ds_read_b128 {v(KF0[k],4)}, v{vKV} offset:{k*1024}' for k in range(4)]
    kf1 = [f'ds_read_b128 {v(KF1[k],4)}, v{vKV} offset:{4096+k*1024}' for k in range(4)]
    put(26, kf0 + kf1[:3], 1)
    NEG = QOP + 4
    rs = [f'buffer_store_dwordx4 {v(NEG,4)}, v{vL16}, {srd(S_WS)}, s{sPld} offen offset:{c*1024} {st}' for c in range(2)]
    F[24 + w].append(rs[0]); F[28 + w].append(rs[1])
    if w == 2: F[23].append(f'buffer_store_dwordx2 {v(NEG,2)}, v{vMst}, {srd(S_WS)}, s{sMrs} offen {st}')
    F[32 + w].append(dma[9]); F[36 + w].append(dma[10]); F[48 + w].append(dma[11]); F[52 + w].append(dma[12])
    qpost = post(Q0, vT0) + post(Q1, vT1) + [f'ds_write2_b32 v{vQw}, v{vT0}, v{vT1} offset0:0 offset1:64']
    put(33, qpost, 1)
    F[40].append(kf1[3])
    kpost = post(K0, vT0) + post(K1, vT1) + [f'ds_write2_b32 v{vKw}, v{vT0}, v{vT1} offset0:0 offset1:128']
    F[40] += kpost[:3]
    F[41] += kpost[3:]
    F[KBAR] += ['s_waitcnt lgkmcnt(0)', 's_barrier']
    if prof: F[KBAR].append(f's_memtime s[{sTS+4}:{sTS+5}]')
    rd = [f'ds_read_b64_tr_b16 {v(QOP+4*ks+2*hf,2)}, v{vQr} offset:{ks*512+hf*64}' for ks in range(4) for hf in range(2)]
    kop = [f'ds_read_b64_tr_b16 {v(KOP[ks]+2*hf,2)}, v{vKr} offset:{ks*1024+hf*128}' for ks in range(4) for hf in range(2)]
    F[KBAR] += rd[:4]
    put(KBAR + 1, rd[4:], 2)
    F[45] += kop[:4]; F[46] += kop[4:6]; F[47] += kop[6:8]
    F[47] += ['s_waitcnt lgkmcnt(8)']
    if prof: F[47].append(f's_memtime s[{sTS+6}:{sTS+7}]')
    VMO = V1 + 2
    vpost = post(V0, V0 + 1) + [f'v_add_f32 v{V1}, v{V1}, v{V1+1}', f'v_add_f32 v{V1+2}, v{V1+2}, v{V1+3}',
                                f'v_cvt_pk_bf16_f32 v{V1+3}, v{V1}, v{V1+2}', f'v_mov_b32 v{V1+2}, v{V0+1}', f'v_lshrrev_b32 v{vT1}, 1, v{vL16}']
    put(49, vpost, 2)
    VF = MFA
    vf = [f'ds_read_b128 {v(VF+4*d,4)}, v{vKV} offset:{8192+(2*w+d)*1024}' for d in range(2)]
    def wo_rd(i, ks, dst):
        return [f'ds_read_b128 {v(dst+4*hf,4)}, v{vWo0+ks} offset:{(i-1)*2048+hf*1024}' for hf in range(2)]
    WB = {(0, 0): WOR, (0, 1): WOR + 8, (1, 0): MFA + 8, (1, 1): X0, (2, 0): MFB, (2, 1): MFB + 8}
    put(52, vf + wo_rd(1, 0, MFA + 8), 1)
    F[55] += ['s_waitcnt lgkmcnt(4)']
    F[56 + (w & 1)].append(f'buffer_store_dwordx2 {v(VMO,2)}, v{vT1}, {srd(S_WS)}, s{sT3} offen sc1')
    F[58 + (w & 1)].append(f'buffer_store_dwordx4 {v(KOP[w],4)}, v{vL16}, {srd(S_WS)}, s{sT4} offen sc1')
    put(56, wo_rd(1, 1, X0), 1)
    m = vT0
    mx = [f'v_max3_f32 v{m}, v{S0}, v{S0+1}, v{S0+2}', f'v_max3_f32 v{m}, v{m}, v{S0+3}, v{S1}',
          f'v_max3_f32 v{m}, v{m}, v{S1+1}, v{S1+2}', f'v_max_f32 v{m}, v{m}, v{S1+3}']
    put(58, mx, 2)
    for k, x in enumerate(bb):
        p(x)
        for y in F[k]:
            if 'vmem' in SKIP and y.startswith('buffer_') and 'sc1' in y and 'lds' in y: continue
            if 'rs' in SKIP and y.startswith('buffer_store'): continue
            p(y)
    stamp(p, 4, prof)
    p(f's_cmp_eq_u32 s{sS}, {LAST}')
    p(f's_cbranch_scc1 L_chain_fin')
    for x in wo_rd(2, 0, MFB) + wo_rd(2, 1, MFB + 8): p(x)
    p(f'v_max3_f32 v{m}, v{m}, v{S2}, v{S2+1}')
    p(f'v_mov_b32 v{vT1}, v{m}')
    p(f'v_permlane16_swap_b32 v{m}, v{vT1}')
    p(f'v_max_f32 v{m}, v{m}, v{vT1}')
    p(f'v_mov_b32 v{vT1}, v{m}')
    p(f'v_permlane32_swap_b32 v{m}, v{vT1}')
    p(f'v_max_f32 v{m}, v{m}, v{vT1}')
    mc = S2 + 2
    p(f'v_mul_f32 v{mc}, s{sC}, v{m}')
    for R in (S0, S0 + 2, S1, S1 + 2, S2):
        p(f'v_pk_fma_f32 {v(R,2)}, {v(R,2)}, s[{sC}:{sC+1}], {v(mc,2)} op_sel_hi:[1,1,0] neg_lo:[0,0,1] neg_hi:[0,0,1]')
    P01 = V0
    OA0, OA1, LA = QOP, QOP + 4, QOP + 8
    for R in (S0, S0 + 1): p(f'v_exp_f32 v{R}, v{R}')
    for R in (S0 + 2, S0 + 3): p(f'v_exp_f32 v{R}, v{R}')
    p(f'v_cvt_pk_bf16_f32 v{P01}, v{S0}, v{S0+1}')
    for R in (S1, S1 + 1): p(f'v_exp_f32 v{R}, v{R}')
    p(f'v_cvt_pk_bf16_f32 v{P01+1}, v{S0+2}, v{S0+3}')
    for R in (S1 + 2, S1 + 3): p(f'v_exp_f32 v{R}, v{R}')
    p(f'v_cvt_pk_bf16_f32 v{P01+2}, v{S1}, v{S1+1}')
    for R in (S2, S2 + 1): p(f'v_exp_f32 v{R}, v{R}')
    p(f'v_cvt_pk_bf16_f32 v{P01+3}, v{S1+2}, v{S1+3}')
    p(f'v_cvt_pk_bf16_f32 v{PZ}, v{S2}, v{S2+1}')
    p(f'v_cvt_pk_bf16_f32 v{PZ+3}, v{S2}, v{S2+1}')
    p('s_waitcnt lgkmcnt(8)')
    p(M32(LA, ONES, P01, '0'))
    p(M32(OA0, VF, P01, '0'))
    p(M32(OA1, VF + 4, P01, '0'))
    p(M16(LA, ONES, PZ, LA))
    p(M16(OA0, VMO, PZ, OA0))
    p(M16(OA1, VMO, PZ + 2, OA1))
    WB[(3, 0)] = Q0
    for x in wo_rd(3, 0, Q0): p(x)
    p(f's_and_b32 s{sPst}, s{sS}, 1')
    p(f's_lshl_b32 s{sPst}, s{sPst}, 18')
    p(f'v_rcp_f32 v{vT0}, v{LA}')
    p(f's_add_u32 s{sPld}, s{sPst}, {WS_PRING}')
    p(f's_add_u32 s{sPst}, s{sPst}, s{sH8}')
    p(f's_add_u32 s{sPst}, s{sPst}, {WS_PRING + 2*w*32768}')
    for R in (OA0, OA0 + 2):
        p(f'v_pk_mul_f32 {v(R,2)}, {v(R,2)}, {v(vT0,2)} op_sel_hi:[1,0]')
    p(f'v_cvt_pk_bf16_f32 v{OA0}, v{OA0}, v{OA0+1}')
    p(f'v_cvt_pk_bf16_f32 v{OA0+1}, v{OA0+2}, v{OA0+3}')
    p(f'ds_write_b64 v{vOw}, {v(OA0,2)}')
    for R in (OA1, OA1 + 2):
        p(f'v_pk_mul_f32 {v(R,2)}, {v(R,2)}, {v(vT0,2)} op_sel_hi:[1,0]')
    p(f'v_cvt_pk_bf16_f32 v{OA1}, v{OA1}, v{OA1+1}')
    p(f'v_cvt_pk_bf16_f32 v{OA1+1}, v{OA1+2}, v{OA1+3}')
    p(f'ds_write_b64 v{vOw}, {v(OA1,2)} offset:32')
    ACC = [K0, K1, V0, V1, X0 + 8, QOP + 8, QOP + 12, QOP + 4]
    for t in range(4):
        p(f'v_mov_b64 {v(ACC[t],2)}, 0'); p(f'v_mov_b64 {v(ACC[t]+2,2)}, 0')
    p('s_waitcnt vmcnt(6) lgkmcnt(0)')
    p('s_barrier')
    stamp(p, 5, prof)
    OA = VF
    p(f'ds_read_b128 {v(OA,4)}, v{vOr}')
    p(f'ds_read_b128 {v(OA+4,4)}, v{vOr} offset:128')
    for t in range(4, 8):
        p(f'v_mov_b64 {v(ACC[t],2)}, 0'); p(f'v_mov_b64 {v(ACC[t]+2,2)}, 0')
    p(f's_add_u32 s{sT0}, s{sS}, 1')
    p(f's_and_b32 s{sT0}, s{sT0}, 3')
    p(f's_lshl_b32 s{sT0}, s{sT0}, 13')
    p(f's_add_u32 s{sMld}, s{sT0}, {WS_MRING + 2*w*1024}')
    if w == 2:
        p(f's_add_u32 s{sMstO}, s{sT0}, s{sPiece}')
        p(f's_and_b32 s{sMrs}, s{sS}, 3')
        p(f's_lshl_b32 s{sMrs}, s{sMrs}, 13')
        p(f's_add_u32 s{sMrs}, s{sMrs}, s{sPiece}')
    p(f's_lshl_b32 s{sT0}, s{sH}, 13')
    p(f's_add_u32 s{sPld}, s{sPld}, s{sT0}')
    if w == 2: p(f's_add_u32 s{sPld2}, s{sPld}, 4096')
    p('s_waitcnt lgkmcnt(0)')
    def wo(i): return [S(ACC[i], OA, v(WB[(i, 0)], 8)), S(ACC[i], OA + 4, v(WB[(i, 1)], 8))]
    OUT0, OUT1 = QOP, K0
    for x in wo(0): p(x)
    p(wo(1)[0])
    WB[(3, 1)] = MFA + 8
    for x in wo_rd(3, 1, MFA + 8): p(x)
    p(wo(1)[1])
    WB[(4, 0)] = X0
    for x in wo_rd(4, 0, X0): p(x)
    p(post(ACC[0], OUT0)[0])
    p(wo(2)[0])
    WB[(4, 1)] = MFB
    for x in wo_rd(4, 1, MFB): p(x)
    p(post(ACC[0], OUT0)[1])
    p(wo(2)[1])
    WB[(5, 0)] = MFB + 8
    for x in wo_rd(5, 0, MFB + 8): p(x)
    p(post(ACC[0], OUT0)[2])
    p(wo(3)[0])
    WB[(5, 1)] = Q0
    for x in wo_rd(5, 1, Q0): p(x)
    p(post(ACC[1], OUT0 + 1)[0])
    p('s_waitcnt lgkmcnt(8)')
    p(wo(3)[1])
    WB[(6, 0)] = MFA + 8
    for x in post(ACC[1], OUT0 + 1)[1:]: p(x)
    for x in post(ACC[2], OUT0 + 2): p(x)
    p('s_waitcnt lgkmcnt(6)')
    p(wo(4)[0])
    WB[(6, 1)] = X0
    for x in post(ACC[3], OUT0 + 3): p(x)
    p(f'buffer_store_dwordx4 {v(OUT0,4)}, v{vPst}, {srd(S_WS)}, s{sPst} offen {st}')
    for x in wo_rd(6, 0, MFA + 8) + wo_rd(6, 1, X0): p(x)
    p('s_waitcnt lgkmcnt(8)')
    p(wo(4)[1])
    WB[(7, 0)] = MFB
    for x in wo_rd(7, 0, MFB): p(x)
    p('s_waitcnt lgkmcnt(8)')
    p(wo(5)[0])
    WB[(7, 1)] = MFB + 8
    for x in wo_rd(7, 1, MFB + 8): p(x)
    p(f's_add_u32 s{sPst}, s{sPst}, 32768')
    p('s_waitcnt lgkmcnt(8)')
    p(wo(5)[1])
    for x in post(ACC[4], OUT1)[:2]: p(x)
    p('s_waitcnt lgkmcnt(4)')
    p(wo(6)[0]); p(post(ACC[4], OUT1)[2])
    p(wo(6)[1])
    for x in post(ACC[5], OUT1 + 1)[:2]: p(x)
    p('s_waitcnt lgkmcnt(0)')
    p(wo(7)[0]); p(post(ACC[5], OUT1 + 1)[2])
    p(wo(7)[1])
    RB = [MF, 60]
    def pld(k): return [f'buffer_load_dwordx4 {v(RB[k]+4*u,4)}, v{vL16}, {srd(S_WS)}, s{sPld if u < 4 else sPld2} offen offset:{(u%4)*1024} sc1' for u in range(8)]
    for x in post(ACC[6], OUT1 + 2): p(x)
    for x in post(ACC[7], OUT1 + 3): p(x)
    p(f'buffer_store_dwordx4 {v(OUT1,4)}, v{vPst}, {srd(S_WS)}, s{sPst} offen {st}')
    stamp(p, 6, prof)
    if w == 2:
        D = X0
        def red(k, young):
            for u in range(8):
                p(f's_waitcnt vmcnt({7-u+young})')
                p(M32(D, RB[k] + 4 * u, SEL, '0' if u == 0 else D))
            p(f'v_cmp_u_f32 vcc, v{D}, v{D+1}')
            p(f'v_cmp_u_f32 s[{sPP}:{sPP+1}], v{D+2}, v{D+3}')
            p(f'v_cvt_pk_bf16_f32 v{D+4}, v{D}, v{D+1}')
            p(f'v_cvt_pk_bf16_f32 v{D+5}, v{D+2}, v{D+3}')
            p(f's_or_b64 vcc, vcc, s[{sPP}:{sPP+1}]')
            p(f's_cbranch_vccz L_prok_{tag}')
        p(f's_mov_b32 s{sT4}, 0')
        p(f's_bitcmp1_b32 s{sH}, 2')
        p(f's_cbranch_scc0 L_prE_{tag}')
        p(f's_sleep {ODD_SLEEP - EV_SLEEP}')
        p.label(f'L_prE_{tag}')
        if EV_SLEEP: p(f's_sleep {EV_SLEEP}')
        for x in pld(0): p(x)
        red(0, 0)
        for x in pld(0): p(x)
        p('s_sleep 2')
        for x in pld(1): p(x)
        p.label(f'L_pr0_{tag}')
        red(0, 8)
        p.label(f'L_pr1_{tag}')
        for x in pld(0): p(x)
        red(1, 8)
        for x in pld(1): p(x)
        spin(p)
        p(f's_add_u32 s{sT4}, s{sT4}, 1')
        p(f's_and_b32 s{sT0}, s{sT4}, 63')
        p(f's_cmp_lg_u32 s{sT0}, 0')
        p(f's_cbranch_scc1 L_pr0_{tag}')
        p('s_waitcnt vmcnt(8)')
        p(f'v_max3_u32 v{vT0}, v{RB[0]}, v{RB[0]+1}, v{RB[0]+2}')
        for k in range(3, 31, 2):
            p(f'v_max3_u32 v{vT0}, v{vT0}, v{RB[0]+k}, v{RB[0]+k+1}')
        p(f'v_max_u32 v{vT0}, v{vT0}, v{RB[0]+31}')
        p(f'v_cmp_eq_u32 vcc, -1, v{vT0}')
        p(f's_cbranch_vccnz L_pr0_{tag}')
        for u in range(8): p(M32(D, RB[0] + 4 * u, SEL, '0' if u == 0 else D))
        p(f'v_cvt_pk_bf16_f32 v{D+4}, v{D}, v{D+1}')
        p(f'v_cvt_pk_bf16_f32 v{D+5}, v{D+2}, v{D+3}')
        p.label(f'L_prok_{tag}')
        p(f's_mov_b64 exec, s[{sM8}:{sM8+1}]')
        p(f'buffer_store_dwordx2 {v(D+4,2)}, v{vMst}, {srd(S_WS)}, s{sMstO} offen {st}')
        p(f's_mov_b64 exec, -1')
        stamp(p, 7, prof)
        p('s_waitcnt vmcnt(1)')
    if w == 0:
        p(f's_add_u32 s{sT3}, s{sS}, 2')
        p(f's_min_u32 s{sT3}, s{sT3}, 63')
        kv_ready(p)
    p('s_barrier')
    p(f's_mov_b32 s{sB}, 0')
    if w: p(f's_add_u32 s{sPld}, s{sPld}, {w*2048}')
    def mload2(): return f'buffer_load_dwordx4 {v(PA2,4)}, v{vL16}, {srd(S_WS)}, s{sMld} offen sc1'
    p(mload(QA))
    for t in (Q0, Q1, K0, K1, V0, V1):
        p(f'v_mov_b64 {v(t,2)}, 0'); p(f'v_mov_b64 {v(t+2,2)}, 0')
    p(f'v_mov_b64 {v(QOP+4,2)}, {SENT}'); p(f'v_mov_b64 {v(QOP+6,2)}, {SENT}')
    p.label(f'L_pa_{tag}')
    p(mload2())
    p('s_waitcnt vmcnt(1)')
    chk(p, MFq(QA))
    p(f's_cbranch_vccz L_paok_{tag}')
    p(mload(QA))
    spin(p)
    p('s_waitcnt vmcnt(1)')
    chk(p, PA2)
    p(f's_cbranch_vccnz L_pa_{tag}')
    p(f'ds_write_b128 v{vHi}, {v(PA2,4)} offset:{L_MX - L_KVB + QA*1024}')
    p(f'v_mov_b64 {v(MFq(QA),2)}, {v(PA2,2)}')
    p(f'v_mov_b64 {v(MFq(QA)+2,2)}, {v(PA2+2,2)}')
    p(f's_branch L_paok2_{tag}')
    p.label(f'L_paok_{tag}')
    p(mwr(QA))
    p.label(f'L_paok2_{tag}')
    p(mload(QB))
    if w != 2: stamp(p, 7, prof)
    if prof:
        p(f's_cmp_eq_u32 s{sS}, 40')
        p(f's_cbranch_scc0 L_nodump_{tag}')
        p(f's_memtime s[{sTS+16}:{sTS+17}]')
        p('s_waitcnt lgkmcnt(0)')
        p(f's_add_u32 s{sT0}, s{sH8}, s{sPB}')
        for k in range(9):
            p(f'v_mov_b32 v{vT0}, s{sTS+2*k}')
            p(f'buffer_store_dword v{vT0}, off, {srd(S_WS)}, s{sT0} offset:{(w*16+k)*4}')
        p(f'v_mov_b32 v{vT0}, s{sSpin}')
        p(f'buffer_store_dword v{vT0}, off, {srd(S_WS)}, s{sT0} offset:{(w*16+9)*4}')
        p(f'v_mov_b32 v{vT0}, s90')
        p(f'buffer_store_dword v{vT0}, off, {srd(S_WS)}, s{sT0} offset:{(w*16+10)*4}')
        p.label(f'L_nodump_{tag}')
    p(f's_add_u32 s{sS}, s{sS}, 1')
    p('s_waitcnt lgkmcnt(0)')
    p('s_barrier')
    for Q in (0, 2, 4, 6):
        if Q != QA: p(mrd(Q))
    p(f's_branch L_step_{tag}')


def chain_role(p, prof=False, light=False):
    build_srd(p, S_WQ, 16, 4 * MB)
    build_srd(p, S_WK, 24, 4 * MB)
    build_srd(p, S_WV, 32, 4 * MB)
    build_srd(p, S_WO, 40, 4 * MB)
    build_srd(p, S_M0, 8, 8192)
    p(f's_mov_b32 s{sM8}, 0x00ff00ff')
    p(f's_mov_b32 s{sM8+1}, 0x00ff00ff')
    cval = f32(math.log2(math.e) / math.sqrt(128.0))
    p(f's_mov_b32 s{sC}, {cval:#x}')
    p(f's_mov_b32 s{sC+1}, {cval:#x}')
    p(f's_mov_b32 s{sPB}, {WS_PROF}')
    p(f's_lshl_b32 s{sH8}, s{sH}, 8')
    p(f's_add_u32 s{sFk}, s{sH8}, {WS_FKV}')
    p(f's_lshl_b32 s{sFm}, s{sH}, 9')
    p(f's_add_u32 s{sFm}, s{sFm}, {WS_FMEM}')
    p(f's_mov_b32 s{sRdy}, 0')
    p(f's_lshr_b32 s{sT0}, s{sH}, 2')
    p(f's_lshl_b32 s{sT0}, s{sT0}, 10')
    p(f's_and_b32 s{sT1}, s{sH}, 3')
    p(f's_lshl_b32 s{sT1}, s{sT1}, 6')
    p(f's_add_u32 s{sPiece}, s{sT0}, s{sT1}')
    p(f's_add_u32 s{sPiece}, s{sPiece}, {WS_MRING}')
    lane_consts(p)
    for r in range(4): p(f'v_mov_b32 v{40+r}, -1')
    p(f's_lshl_b32 s{sT0}, s{sH}, 13')
    p(f's_lshl_b32 s{sT1}, s{sW}, 11')
    p(f's_add_u32 s{sT0}, s{sT0}, s{sT1}')
    p(f's_add_u32 s{sT0}, s{sT0}, {WS_PRING}')
    p(f's_add_u32 s{sT1}, s{sT0}, 262144')
    p(f's_lshl_b32 s{sT2}, s{sW}, 13')
    p(f's_add_u32 s{sT2}, s{sT2}, s{sPiece}')
    p(f's_cmp_lg_u32 s{sMode}, 0')
    p('s_cbranch_scc1 L_ci_s')
    for st in ('', 'sc1'):
        if st: p.label('L_ci_s')
        for c in range(2):
            p(f'buffer_store_dwordx4 v[40:43], v{vL16}, {srd(S_WS)}, s{sT0} offen offset:{c*1024} {st}')
            p(f'buffer_store_dwordx4 v[40:43], v{vL16}, {srd(S_WS)}, s{sT1} offen offset:{c*1024} {st}')
        p(f'buffer_store_dwordx2 v[40:41], v{vMst}, {srd(S_WS)}, s{sT2} offen {st}')
        if not st: p('s_branch L_ci_d')
    p.label('L_ci_d')
    p(f's_waitcnt vmcnt(0) lgkmcnt(0)')
    p(f's_barrier')
    dbg_add(p, D_TEAM, 40, 41)
    load_weights(p)
    p(f'v_lshlrev_b32 v{vT1}, 4, v0')
    p(f'v_add_u32 v{vT1}, {L_KX}, v{vT1}')
    p(f'ds_write_b128 v{vT1}, {v(PZ,4)}')
    p(f'v_mov_b32 v{QOP}, v{tM0}')
    for Q in range(8):
        p(f'buffer_load_dwordx4 {v(MFq(Q),4)}, v{QOP}, {srd(S_M0)}, 0 offen offset:{Q*128}')
    for t in (Q0, Q1, K0, K1, V0, V1):
        p(f'v_mov_b64 {v(t,2)}, 0'); p(f'v_mov_b64 {v(t+2,2)}, 0')
    wait_ge(p, S_DBG, '0', D_TEAM * 4, 32, QOP)
    p(f's_mov_b32 s{sT3}, 1')
    kv_ready(p)
    p(f's_mov_b32 s{sT2}, 0')
    L = kv_dma(sT2, (0,))
    for x in L[:7]: p(x)
    p(f's_lshl_b32 s{sT3}, s{sW}, 12')
    p(f's_add_u32 s{sT0}, s{sT0}, s{sT3}')
    p(f's_add_u32 s{sT1}, s{sT1}, s{sT3}')
    for x in L[7:]: p(x)
    p(f's_mov_b32 s{sS}, 0')
    p(f's_mov_b32 s{sB}, 1')
    p(f's_lshl_b32 s{sT0}, s{sH}, 13')
    p(f's_lshl_b32 s{sT1}, s{sW}, 11')
    p(f's_add_u32 s{sPld}, s{sT0}, s{sT1}')
    p(f's_add_u32 s{sPld}, s{sPld}, {WS_PRING + 262144}')
    p(f's_mov_b32 s{sMrs}, s{sPiece}')
    p(f'v_mov_b64 {v(QOP+4,2)}, -1'); p(f'v_mov_b64 {v(QOP+6,2)}, -1')
    p('s_waitcnt vmcnt(0)')
    p('s_barrier')
    if light:
        p('s_memrealtime s[94:95]')
        p('s_waitcnt lgkmcnt(0)')
    p(f's_lshl_b32 s{sT0}, s{sMode}, 2')
    p(f's_add_u32 s{sT0}, s{sT0}, s{sW}')
    k = 0
    for st in ('', 'sc1'):
        for w in range(4):
            if k:
                p(f's_cmp_eq_u32 s{sT0}, {k}')
                p(f's_cbranch_scc1 L_step_w{w}{"s" if st else "f"}')
            k += 1
    for st in ('', 'sc1'):
        for w in range(4):
            step_body(p, w, st, prof)
    p.label('L_chain_fin')
    p('s_waitcnt vmcnt(0)')
    p('s_barrier')
    p(f's_cmp_lg_u32 s{sW}, 3')
    p('s_cbranch_scc1 L_end')
    p(f'buffer_store_dword v{ONES}, off, {srd(S_WS)}, s{sFm} sc1')
    if light:
        p('s_memrealtime s[96:97]')
        p('s_waitcnt lgkmcnt(0)')
        p(f's_lshl_b32 s{sT0}, s{sH}, 4')
        p(f's_add_u32 s{sT0}, s{sT0}, {WS_PROF + 16384}')
        p('v_mov_b32 v60, s92')
        p('v_mov_b32 v61, s94')
        p('v_mov_b32 v62, s96')
        p('v_mov_b32 v63, s51')
        p(f'buffer_store_dwordx4 v[60:63], off, {srd(S_WS)}, s{sT0}')
    p('s_branch L_end')
```

```python
from asmlib import *
from layout import *
import math, struct, os
S_WS, S_DBG = 4, 28
sH, sW, sS = 32, 33, 34
sT0, sT1, sT2, sT3, sT4 = 40, 41, 42, 43, 44
sSpin = 51
sTeam, sMode = 58, 59
SPIN_MAX = 3000000
def srd(n): return f's[{n}:{n+3}]'
def v(a, n=1): return f'v{a}' if n == 1 else f'v[{a}:{a+n-1}]'
def a_(a, n=1): return f'a{a}' if n == 1 else f'a[{a}:{a+n-1}]'
def R(r, n=1):
    return a_(r - 256, n) if r >= 256 else v(r, n)
def M32(D, A, B, C): return f'v_mfma_f32_16x16x32_bf16 {R(D,4)}, {R(A,4)}, {R(B,4)}, {C if C=="0" else R(C,4)}'
def M16(D, A, B, C): return f'v_mfma_f32_16x16x16_bf16 {R(D,4)}, {R(A,2)}, {R(B,2)}, {C if C=="0" else R(C,4)}'
def f32(x): return struct.unpack('<I', struct.pack('<f', x))[0]
def build_srd(p, n, ka_off, size):
    p(f's_load_dwordx2 s[{n}:{n+1}], s[0:1], {ka_off}')
    p(f's_mov_b32 s{n+2}, {size}')
    p(f's_mov_b32 s{n+3}, 0x20000')
def spin(p):
    p(f's_add_u32 s{sSpin}, s{sSpin}, 1')
    p(f's_cmp_gt_u32 s{sSpin}, {SPIN_MAX}')
    p(f's_cbranch_scc1 L_end')
_uid = [0]
def uid():
    _uid[0] += 1
    return _uid[0]
def wait_ge(p, S, soff, imm, val, vt, sleep=2):
    u = uid()
    p.label(f'L_wg{u}')
    p(f'buffer_load_dword v{vt}, off, {srd(S)}, {soff} offset:{imm} sc1')
    spin(p)
    p('s_waitcnt vmcnt(0)')
    p(f'v_readfirstlane_b32 s{sT0}, v{vt}')
    p(f's_cmp_ge_u32 s{sT0}, {val}')
    p(f's_cbranch_scc1 L_wd{u}')
    p(f's_sleep {sleep}')
    p(f's_branch L_wg{u}')
    p.label(f'L_wd{u}')
def dbg_add(p, idx, va, vb):
    u = uid()
    p(f's_cmp_lg_u32 s{sW}, 0')
    p(f's_cbranch_scc1 L_da{u}')
    p(f's_mov_b64 exec, 1')
    p(f'v_mov_b32 v{va}, 1')
    if isinstance(idx, int):
        p(f'buffer_atomic_add v{va}, off, {srd(S_DBG)}, 0 offset:{idx*4}')
    else:
        p(f'buffer_atomic_add v{va}, off, {srd(S_DBG)}, {idx} offset:{D_TEAM*4}')
    p(f's_mov_b64 exec, -1')
    p.label(f'L_da{u}')
def unpack2(lo, hi, src):
    return [f'v_lshlrev_b32 v{lo}, 16, v{src}', f'v_and_b32 v{hi}, 0xffff0000, v{src}']
def xsum4(p, x, t, op='v_add_f32'):
    p(f'v_mov_b32 v{t}, v{x}')
    p(f'v_permlane16_swap_b32 v{x}, v{t}')
    p(f'{op} v{x}, v{x}, v{t}')
    p(f'v_mov_b32 v{t}, v{x}')
    p(f'v_permlane32_swap_b32 v{x}, v{t}')
    p(f'{op} v{x}, v{x}, v{t}')
```

```python
MB = 1 << 20
WS_KVF = 0
WS_KM = 32 * MB
WS_VM = 40 * MB
WS_PRING = 44 * MB
WS_MRING = 45 * MB
WS_HF = 46 * MB
WS_MOD = 48 * MB
WS_FKV = 49 * MB
WS_FMEM = WS_FKV + 8192
WS_FH = WS_FKV + 24576
WS_TEAM = 64 * MB
TEAM_STRIDE = 4 * MB
T_P2 = 0
T_P3 = 1 * MB
T_H2 = 2 * MB
WS_PROF = 200 * MB
WS_DUMP = 208 * MB
WS_SIZE = 256 * MB
D_XCD, D_ALL, D_MODA, D_LN1, D_MODB, D_CW, D_TEAM = 0, 8, 9, 10, 11, 12, 16
L_WO0 = 0
L_WO1 = 57344
L_KVB = 114688
L_MX = 147456
L_KX = 155648
L_QX = 159744
L_OX = 159744
L_END = 161920
LDS_BYTES = 163840
NKV = 2
NPOST = 5
```

```python
from roles import *
DUMP = int(os.environ.get('DUMP', 0))
P_HB, P_KV, P_KM, P_VM, P_QX, P_OX, P_H2, P_HID, P_RED = 0, 32768, 49152, 53248, 57344, 65536, 73728, 106496, 110592
S_Q, S_O, S_1, S_2, S_X, S_OUT, S_B = 8, 12, 16, 20, 24, 60, 64
sSeg, sTB, sM32, sC, sR2, sR3, sHP, sPP, sSt = 35, 36, 38, 46, 47, 48, 49, 54, 50
sXo, sFl = 52, 53
vL16, vL16h, vPst, vPld, vHP, vCol, vHidw, vQo, vVf, vVm, vOw = range(1, 12)
GA, C1B, SB, GB, B2, B1, SEL, ONES, MASK, PZ, X1, XIN = 12, 16, 20, 24, 28, 32, 36, 40, 44, 52, 56, 60
W0 = 62
def WQ(t, ks): return 256 + (t * 16 + ks) * 4
def WO(i, ks): return 256 + 128 + (i * 4 + ks) * 4
def W1(ks): return 128 + ks * 4
def W2(i, ks): return 192 + (i * 2 + ks) * 4

def post_setup(p):
    build_srd(p, S_Q, 16, 4 * MB)
    build_srd(p, S_O, 40, 4 * MB)
    build_srd(p, S_1, 64, 512 * 1792 * 2)
    build_srd(p, S_2, 80, 512 * 1792 * 2)
    build_srd(p, S_X, 0, 2 * MB)
    build_srd(p, S_OUT, 112, 2 * MB)
    ids = lane_ids(p, 100)
    l, n, g, r, c = ids
    t, u = 105, 106
    vSrc, vSrc1, bQ, bO, b1 = 108, 109, 110, 112, 114
    p(f'v_lshlrev_b32 v{vL16}, 4, v{l}')
    p(f'v_add_u32 v{vL16h}, 0x10000, v{vL16}')
    p(f'v_lshlrev_b32 v{vSrc}, 13, v{g}')
    p(f'v_lshl_add_u32 v{vSrc}, v{n}, 4, v{vSrc}')
    p(f'v_lshrrev_b32 v{t}, 3, v{l}')
    p(f'v_mul_u32_u24 v{t}, 3584, v{t}')
    p(f'v_and_b32 v{u}, 7, v{l}')
    p(f'v_lshl_add_u32 v{vSrc1}, v{u}, 4, v{t}')
    tr_bases(p, bQ, 8, True, 6, 4, ids, t)
    tr_bases(p, bO, 10, False, 8, 4, ids, t)
    tr_bases(p, b1, 7, True, 5, 3, ids, t)
    p(f'v_lshlrev_b32 v{t}, 15, v{n}')
    p(f'v_lshl_add_u32 v{vPst}, v{g}, 4, v{t}')
    p(f'v_lshlrev_b32 v{t}, 10, v{g}')
    p(f'v_lshl_add_u32 v{vPld}, v{n}, 4, v{t}')
    p(f'v_lshlrev_b32 v{t}, 10, v{r}')
    p(f'v_lshl_add_u32 v{t}, v{c}, 8, v{t}')
    p(f'v_lshl_add_u32 v{vHP}, v{g}, 3, v{t}')
    p(f'v_lshlrev_b32 v{t}, 4, v{n}')
    p(f'v_lshl_add_u32 v{vCol}, v{g}, 3, v{t}')
    p(f's_lshr_b32 s{sT0}, s{sW}, 1')
    p(f's_lshl_b32 s{sT1}, s{sT0}, 10')
    p(f's_and_b32 s{sT2}, s{sW}, 1')
    p(f's_lshl_b32 s{sT3}, s{sT2}, 3')
    p(f's_add_u32 s{sT1}, s{sT1}, s{sT3}')
    p(f's_add_u32 s{sT1}, s{sT1}, {P_HID}')
    p(f'v_add_u32 v{vHidw}, s{sT1}, v{vL16}')
    p(f's_lshl_b32 s{sT3}, s{sT2}, 12')
    p(f'v_add_u32 v{vQo}, s{sT3}, v{vL16}')
    p(f's_lshl_b32 s{sT4}, s{sT0}, 12')
    p(f'v_add_u32 v{vVf}, s{sT4}, v{vL16}')
    p(f'v_lshrrev_b32 v{t}, 1, v{vL16}')
    p(f's_lshl_b32 s{sT4}, s{sT0}, 10')
    p(f'v_add_u32 v{vVm}, s{sT4}, v{t}')
    p(f's_lshl_b32 s{sT4}, s{sT0}, 11')
    p(f's_add_u32 s{sT4}, s{sT4}, s{sT3}')
    p(f'v_add_u32 v{vOw}, s{sT4}, v{vL16h}')
    p(f's_lshl_b32 s{sT3}, s{sT2}, 4')
    p(f'v_lshlrev_b32 v{t}, 2, v{g}')
    p(f'v_sub_u32 v{t}, v{n}, v{t}')
    p(f'v_add_u32 v{t}, s{sT3}, v{t}')
    p(f'v_mov_b32 v{u}, {f32(-1e30):#x}')
    for kt in range(2):
        for rr in range(4):
            p(f'v_cmp_gt_i32 vcc, {16*kt+rr}, v{t}')
            p(f'v_cndmask_b32 v{MASK+4*kt+rr}, 0, v{u}, vcc')
    for k in range(4): p(f'v_mov_b32 v{ONES+k}, 0x3f803f80')
    for k in range(4): p(f'v_mov_b32 v{PZ+k}, 0')
    p(f'v_mov_b32 v{t}, 0x3f80')
    p(f'v_mov_b32 v{u}, 0x3f800000')
    for k in range(4):
        p(f'v_mov_b32 v{SEL+k}, 0')
        p(f'v_cmp_eq_u32 vcc, {2*k}, v{n}')
        p(f'v_cndmask_b32 v{SEL+k}, v{SEL+k}, v{t}, vcc')
        p(f'v_cmp_eq_u32 vcc, {2*k+1}, v{n}')
        p(f'v_cndmask_b32 v{SEL+k}, v{SEL+k}, v{u}, vcc')
    p(f's_mov_b32 s{sM32}, -1')
    p(f's_mov_b32 s{sM32+1}, 0')
    p(f's_mov_b32 s{sC}, {f32(math.log2(math.e) / math.sqrt(128.0)):#x}')
    p(f's_sub_u32 s{sTB}, s{sTeam}, {1+NKV}')
    p(f's_mov_b32 s{sSeg}, s{sTB}')
    p(f's_lshl_b32 s{sTB}, s{sTB}, 22')
    p(f's_add_u32 s{sTB}, s{sTB}, {WS_TEAM}')
    p(f's_lshl_b32 s{sT0}, s{sH}, 15')
    p(f's_lshl_b32 s{sT1}, s{sW}, 8')
    p(f's_add_u32 s{sR2}, s{sT0}, s{sT1}')
    p(f's_add_u32 s{sR2}, s{sR2}, s{sTB}')
    p(f's_add_u32 s{sR3}, s{sR2}, {T_P3}')
    p(f's_lshl_b32 s{sT0}, s{sH}, 10')
    p(f's_add_u32 s{sSt}, s{sT0}, s{sT1}')
    p(f's_add_u32 s{sSt}, s{sSt}, s{sTB}')
    p(f's_lshr_b32 s{sT0}, s{sH}, 4')
    p(f's_lshl_b32 s{sT0}, s{sT0}, 14')
    p(f's_lshl_b32 s{sT1}, s{sW}, 12')
    p(f's_add_u32 s{sHP}, s{sT0}, s{sT1}')
    p(f's_and_b32 s{sT0}, s{sH}, 15')
    p(f's_lshl_b32 s{sT0}, s{sT0}, 4')
    p(f's_add_u32 s{sHP}, s{sHP}, s{sT0}')
    p(f's_add_u32 s{sHP}, s{sHP}, s{sTB}')
    p(f's_add_u32 s{sHP}, s{sHP}, {T_H2}')
    p('s_waitcnt lgkmcnt(0)')
    return vSrc, vSrc1, bQ, bO, b1, g

def resets(p, st, sbase, nload, NEG):
    p(f's_mov_b32 s{sT1}, s{sbase}')
    for u in range(nload):
        p(f'buffer_store_dwordx4 {v(NEG,4)}, v{vPld}, {srd(S_WS)}, s{sT1} offen {st}')
        if u < nload - 1: p(f's_add_u32 s{sT1}, s{sT1}, 4096')

def post_init_rings(p, st):
    NEG = W0
    for k in range(4): p(f'v_mov_b32 v{NEG+k}, -1')
    resets(p, st, sR2, 8, NEG)
    resets(p, st, sR3, 8, NEG)
    p(f's_mov_b64 exec, s[{sM32}:{sM32+1}]')
    p(f'buffer_store_dwordx2 {v(NEG,2)}, v{vHP}, {srd(S_WS)}, s{sHP} offen {st}')
    p('s_mov_b64 exec, -1')
    p('s_waitcnt vmcnt(0)')
    p('s_barrier')
    p(f's_lshl_b32 s{sT1}, s{sTeam}, 2')
    dbg_add(p, f's{sT1}', W0, W0 + 1)

def post_weights(p, H):
    vSrc, vSrc1, bQ, bO, b1, g = H
    sF = 37
    p(f's_min_u32 s{sF}, s{sH}, 27')
    def issue(c, sl):
        if c < 8: issue_headmat(p, S_Q, c, sl, vSrc)
        elif c < 16:
            p(f's_lshl_b32 s{sT3}, s{sH}, 17')
            issue_linear(p, S_O, sT3, (c - 8) * 16384, sl, vL16)
        elif c < 20:
            i = c - 16
            set_m0(p, sl)
            p(f's_mul_i32 s{sT1}, s{sW}, {32*3584}')
            p(f's_lshl_b32 s{sT2}, s{sF}, 7')
            p(f's_add_u32 s{sT1}, s{sT1}, s{sT2}')
            p(f's_add_u32 s{sT1}, s{sT1}, {128*i*3584}')
            for zz in range(4):
                p(f'buffer_load_dwordx4 v{vSrc1}, {srd(S_1)}, s{sT1} offen offset:{zz*1024} lds')
                if zz < 3: p(f's_add_u32 s{sT1}, s{sT1}, {8*3584-1024}')
        else:
            p(f's_lshl_b32 s{sT3}, s{sF}, 16')
            issue_linear(p, S_2, sT3, (c - 20) * 16384, sl, vL16)
    def consume(c, sl):
        if c < 8: consume_headmat(p, c, sl, bQ, True, 256)
        elif c < 16 or c >= 20:
            b = c - 8 if c < 16 else c - 20
            for i in range(8):
                imm = (sl % 4) * 16384 + (i >> 1) * 64 + (i & 1) * 8
                dst = (WO(i, b >> 1) if c < 16 else W2(i, b >> 1)) + 2 * (b & 1)
                p(f'ds_read_b64_tr_b16 {R(dst,2)}, v{bO + (sl >= 4)} offset:{imm}')
        else:
            i = c - 16
            for ksl in range(4):
                for hf in range(2):
                    imm = (sl % 4) * 16384 + (32 * ksl + 4 * hf) * 128
                    p(f'ds_read_b64_tr_b16 {R(W1(4*i+ksl)+2*hf,2)}, v{b1 + (sl >= 4)} offset:{imm}')
    staged_load(p, 24, issue, consume)
    build_srd(p, S_B, 72, 3584)
    build_srd(p, S_Q, 88, 1024)
    wait_ge(p, S_DBG, '0', D_MODB * 4, 32, W0)
    wait_ge(p, S_DBG, '0', D_LN1 * 4, 128, W0)
    p('s_waitcnt lgkmcnt(0)')
    T = W0
    p(f's_lshl_b32 s{sT1}, s{sW}, 8')
    p(f's_add_u32 s{sT2}, s{sT1}, {WS_MOD}')
    for k, part in enumerate((2, 4, 3)):
        p(f'buffer_load_dwordx2 {v(T+2*k,2)}, v{vCol}, {srd(S_WS)}, s{sT2} offen offset:{part*1024 if part < 4 else 0} sc1' if part < 4 else
          f'buffer_load_dwordx2 {v(T+2*k,2)}, v{vCol}, {srd(S_WS)}, s{sT3} offen sc1')
        if k == 0: p(f's_add_u32 s{sT3}, s{sT2}, 4096')
    p(f'buffer_load_dwordx2 {v(T+6,2)}, v{vCol}, {srd(S_WS)}, s{sT3} offen offset:1024 sc1')
    p(f'buffer_load_dwordx2 {v(T+8,2)}, v{vCol}, {srd(S_Q)}, s{sT1} offen')
    p(f'v_lshlrev_b32 v{T+12}, 3, v{g}')
    p(f's_lshl_b32 s{sT1}, s{sF}, 7')
    p(f's_lshl_b32 s{sT2}, s{sW}, 5')
    p(f's_add_u32 s{sT1}, s{sT1}, s{sT2}')
    p(f'buffer_load_dwordx2 {v(T+10,2)}, v{T+12}, {srd(S_B)}, s{sT1} offen')
    p('s_waitcnt vmcnt(0)')
    for k, D in enumerate((GA, C1B, SB, GB, B2, B1)):
        for d in range(2):
            for x in unpack2(D + 2 * d, D + 2 * d + 1, T + 2 * k + d): p(x)

def dma_block(p, ssrc_setup, lds_off, n):
    k = 0
    while k < n:
        p(f's_mov_b32 m0, s{sT2}')
        p('s_nop 0')
        for zz in range(min(4, n - k)):
            p(f'buffer_load_dwordx4 v{vL16}, {srd(S_WS)}, s{sT1} offen offset:{zz*1024} sc1 lds')
        k += 4
        if k < n:
            p(f's_add_u32 s{sT1}, s{sT1}, 4096'); p(f's_add_u32 s{sT2}, s{sT2}, 4096')

def h_dma(p, sseg):
    p(f's_lshl_b32 s{sT1}, s{sseg}, 15')
    p(f's_lshl_b32 s{sT2}, s{sW}, 13')
    p(f's_add_u32 s{sT1}, s{sT1}, s{sT2}')
    p(f's_add_u32 s{sT1}, s{sT1}, {WS_HF}')
    dma_block(p, None, 0, 8)

def gather_reduce(p, tag, sbase, nload, D, RB):
    p(f's_mov_b32 s{sT4}, 0')
    p.label(f'L_g_{tag}')
    p(f's_mov_b32 s{sT1}, s{sbase}')
    for u in range(nload):
        p(f'buffer_load_dwordx4 {v(RB+4*u,4)}, v{vPld}, {srd(S_WS)}, s{sT1} offen sc1')
        if u < nload - 1: p(f's_add_u32 s{sT1}, s{sT1}, 4096')
    spin(p)
    for u in range(nload):
        p(f's_waitcnt vmcnt({nload-1-u})')
        p(M32(D, SEL, RB + 4 * u, '0' if u == 0 else D))
    p(f'v_cmp_u_f32 vcc, v{D}, v{D+1}')
    p(f'v_cmp_u_f32 s[{sPP}:{sPP+1}], v{D+2}, v{D+3}')
    p(f's_or_b64 vcc, vcc, s[{sPP}:{sPP+1}]')
    p(f's_cbranch_vccz L_gok_{tag}')
    t = D
    p(f'v_max3_u32 v{t}, v{RB}, v{RB+1}, v{RB+2}')
    for k in range(3, 4 * nload - 1, 2):
        p(f'v_max3_u32 v{t}, v{t}, v{RB+k}, v{RB+k+1}')
    p(f'v_max_u32 v{t}, v{t}, v{RB+4*nload-1}')
    p(f'v_cmp_eq_u32 vcc, -1, v{t}')
    p(f's_cbranch_vccnz L_g_{tag}')
    for u in range(nload): p(M32(D, SEL, RB + 4 * u, '0' if u == 0 else D))
    p.label(f'L_gok_{tag}')

def out_gemm(p, st, WF, nks, BF, sdst):
    ACCS = [W0 + 34, W0 + 50]
    p(f's_add_u32 s{sT3}, s{sdst}, {16*32768}')
    pend = []
    for pr in range(4):
        A = ACCS[pr & 1]
        mf = []
        for ks in range(nks):
            for tt in range(2):
                for t in range(2):
                    acc = A + 8 * tt + 4 * t
                    mf.append(M32(acc, WF(2 * pr + t, ks), BF(tt, ks), '0' if ks == 0 else acc))
        for k, m in enumerate(mf):
            p(m)
            if k >= 2:
                for _ in range(2):
                    if pend: p(pend.pop(0))
        for x in pend: p(x)
        pend = []
        for tt in range(2):
            a0, a1 = A + 8 * tt, A + 8 * tt + 4
            pend += [f'v_cvt_pk_bf16_f32 v{a0}, v{a0}, v{a0+1}', f'v_cvt_pk_bf16_f32 v{a0+1}, v{a0+2}, v{a0+3}',
                     f'v_cvt_pk_bf16_f32 v{a0+2}, v{a1}, v{a1+1}', f'v_cvt_pk_bf16_f32 v{a0+3}, v{a1+2}, v{a1+3}',
                     f'buffer_store_dwordx4 {v(a0,4)}, v{vPst}, {srd(S_WS)}, s{sdst if tt == 0 else sT3} offen offset:{pr*64} {st}']
    for x in pend: p(x)

def rowsum(p, x, t, slot):
    for d in ('quad_perm:[1,0,3,2]', 'quad_perm:[2,3,0,1]', 'row_half_mirror', 'row_mirror'):
        p(f'v_add_f32_dpp v{x}, v{x}, v{x} {d} row_mask:0xf bank_mask:0xf')
    p(f'v_mov_b32 v{t}, v{x}')
    p('s_mov_b64 exec, -1')
    p(f'v_permlane16_swap_b32 v{x}, v{t}')
    p(f's_mov_b64 exec, s[{sM32}:{sM32+1}]')
    p(f'v_add_f32 v{x}, v{x}, v{t}')
    p(f's_lshl_b32 s{sT1}, s{sW}, 2')
    p(f's_add_u32 s{sT1}, s{sT1}, {P_RED + slot*16}')
    p(f'v_mov_b32 v{t}, s{sT1}')
    p(f'ds_write_b32 v{t}, v{x}')
    p('s_waitcnt vmcnt(0) lgkmcnt(0)')
    p('s_barrier')
    p(f'v_mov_b32 v{t}, {P_RED + slot*16}')
    p(f'ds_read_b128 {v(t+2,4)}, v{t}')
    p('s_waitcnt lgkmcnt(0)')
    p(f'v_add_f32 v{t+2}, v{t+2}, v{t+3}')
    p(f'v_add_f32 v{t+4}, v{t+4}, v{t+5}')
    p(f'v_add_f32 v{x}, v{t+2}, v{t+4}')

def post_loop(p, st):
    tg = 's' if st else 'f'
    p(f's_lshl_b32 s{sT1}, s{sTeam}, 2')
    wait_ge(p, S_DBG, f's{sT1}', D_TEAM * 4, 32, W0)
    h_dma(p, sSeg)
    p.label(f'L_post_{tg}')
    p(f's_lshl_b32 s{sXo}, s{sSeg}, 5')
    p(f's_add_u32 s{sFl}, s{sXo}, s{sH}')
    p(f's_lshl_b32 s{sXo}, s{sFl}, 10')
    p(f's_lshl_b32 s{sT1}, s{sW}, 8')
    p(f's_add_u32 s{sXo}, s{sXo}, s{sT1}')
    p(f'buffer_load_dwordx2 {v(XIN,2)}, v{vCol}, {srd(S_X)}, s{sXo} offen')
    p('s_waitcnt vmcnt(0)')
    p('s_barrier')
    HFR = [W0, W0 + 8, W0 + 16]
    QA = [[W0 + 24, W0 + 28], [W0 + 32, W0 + 36]]
    def hrd(ks, base):
        s_ = HFR[ks % 3]
        return [f'ds_read_b128 {v(s_,4)}, v{vL16 if base < 65536 else vL16h} offset:{(base & 65535)+ks*1024}',
                f'ds_read_b128 {v(s_+4,4)}, v{vL16 if base < 65536 else vL16h} offset:{(base & 65535)+16384+ks*1024}']
    for x in hrd(0, P_HB) + hrd(1, P_HB): p(x)
    for ks in range(16):
        if ks + 2 < 16:
            for x in hrd(ks + 2, P_HB): p(x)
            p('s_waitcnt lgkmcnt(4)')
        else: p(f's_waitcnt lgkmcnt({2 if ks == 14 else 0})')
        for rt in range(2):
            for t in range(2):
                p(M32(QA[rt][t], WQ(t, ks), HFR[ks % 3] + 4 * rt, '0' if ks == 0 else QA[rt][t]))
    p(f's_lshl_b32 s{sT1}, s{sW}, 10')
    p(f'v_add_u32 v{W0}, s{sT1}, v{vL16}')
    for rt in range(2):
        a0, a1 = QA[rt]
        p(f'v_cvt_pk_bf16_f32 v{a0}, v{a0}, v{a0+1}'); p(f'v_cvt_pk_bf16_f32 v{a0+1}, v{a0+2}, v{a0+3}')
        p(f'v_cvt_pk_bf16_f32 v{a0+2}, v{a1}, v{a1+1}'); p(f'v_cvt_pk_bf16_f32 v{a0+3}, v{a1+2}, v{a1+3}')
        p(f'ds_write_b128 v{W0}, {v(a0,4)} offset:{P_QX+rt*4096}')
    p(f's_lshl_b32 s{sT3}, s{sH}, 6')
    p(f's_add_u32 s{sT3}, s{sT3}, s{sSeg}')
    p(f's_lshl_b32 s{sT3}, s{sT3}, 2')
    p(f's_add_u32 s{sT3}, s{sT3}, {WS_FKV}')
    wait_ge(p, S_WS, f's{sT3}', 0, 1, W0 + 1)
    p(f's_lshl_b32 s{sT1}, s{sFl}, 14')
    p(f's_lshl_b32 s{sT2}, s{sW}, 12')
    p(f's_add_u32 s{sT1}, s{sT1}, s{sT2}')
    p(f's_add_u32 s{sT2}, s{sT2}, {P_KV}')
    dma_block(p, None, 0, 4)
    p(f's_lshl_b32 s{sT3}, s{sH}, 7')
    p(f's_add_u32 s{sT3}, s{sT3}, s{sSeg}')
    p(f's_lshl_b32 s{sT3}, s{sT3}, 2')
    p(f's_add_u32 s{sT3}, s{sT3}, {WS_FMEM + 4}')
    wait_ge(p, S_WS, f's{sT3}', 0, 1, W0 + 1, sleep=1)
    p(f's_lshl_b32 s{sT1}, s{sFl}, 12')
    p(f's_lshl_b32 s{sT2}, s{sW}, 10')
    p(f's_add_u32 s{sT1}, s{sT1}, s{sT2}')
    p(f's_add_u32 s{sT1}, s{sT1}, {WS_KM}')
    p(f's_add_u32 s{sT2}, s{sT2}, {P_KM}')
    dma_block(p, None, 0, 1)
    p(f's_and_b32 s{sT2}, s{sW}, 1')
    p(f's_lshl_b32 s{sT2}, s{sT2}, 10')
    p(f's_lshl_b32 s{sT1}, s{sFl}, 11')
    p(f's_add_u32 s{sT1}, s{sT1}, s{sT2}')
    p(f's_add_u32 s{sT1}, s{sT1}, {WS_VM}')
    p(f's_add_u32 s{sT2}, s{sT2}, {P_VM}')
    dma_block(p, None, 0, 1)
    p('s_waitcnt vmcnt(0) lgkmcnt(0)')
    p('s_barrier')
    p(f's_add_u32 s{sT3}, s{sSeg}, {NPOST}')
    p(f's_cmp_ge_u32 s{sT3}, 64')
    p(f's_cbranch_scc1 L_nohd_{tg}')
    h_dma(p, sT3)
    p.label(f'L_nohd_{tg}')
    QOP, KA, KB, S0, S1, S2 = W0, W0 + 16, W0 + 32, W0 + 48, W0 + 52, W0 + 56
    T0, T1 = W0 + 60, W0 + 61
    for k in range(4): p(f'ds_read_b128 {v(QOP+4*k,4)}, v{vQo} offset:{P_QX+k*1024}')
    for k in range(4): p(f'ds_read_b128 {v(KA+4*k,4)}, v{vL16} offset:{P_KM+k*1024}')
    for k in range(4): p(f'ds_read_b128 {v(KB+4*k,4)}, v{vL16} offset:{P_KV+k*1024}')
    p('s_waitcnt lgkmcnt(4)')
    for k in range(4): p(M32(S2, KA + 4 * k, QOP + 4 * k, '0' if k == 0 else S2))
    for k in range(4): p(f'ds_read_b128 {v(KA+4*k,4)}, v{vL16} offset:{P_KV+4096+k*1024}')
    p('s_waitcnt lgkmcnt(4)')
    for k in range(4): p(M32(S0, KB + 4 * k, QOP + 4 * k, MASK if k == 0 else S0))
    VF, VMR = KB, W0 + 62
    for k in range(4): p(f'ds_read_b128 {v(VF+4*k,4)}, v{vVf} offset:{P_KV+8192+k*1024}')
    for k in range(2): p(f'ds_read_b64 {v(VMR+2*k,2)}, v{vVm} offset:{P_VM+k*512}')
    p('s_waitcnt lgkmcnt(6)')
    for k in range(4): p(M32(S1, KA + 4 * k, QOP + 4 * k, MASK + 4 if k == 0 else S1))
    m = T0
    p(f'v_max3_f32 v{m}, v{S2}, v{S2+1}, v{S0}')
    p(f'v_max3_f32 v{m}, v{m}, v{S0+1}, v{S0+2}')
    p(f'v_max3_f32 v{m}, v{m}, v{S0+3}, v{S1}')
    p(f'v_max3_f32 v{m}, v{m}, v{S1+1}, v{S1+2}')
    p(f'v_max_f32 v{m}, v{m}, v{S1+3}')
    xsum4(p, m, T1, 'v_max_f32')
    p(f'v_mul_f32 v{m}, s{sC}, v{m}')
    vals = [S0, S0 + 1, S0 + 2, S0 + 3, S1, S1 + 1, S1 + 2, S1 + 3, S2, S2 + 1]
    for r in vals: p(f'v_fma_f32 v{r}, v{r}, s{sC}, -v{m}')
    for r in vals: p(f'v_exp_f32 v{r}, v{r}')
    P01 = QOP
    p(f'v_cvt_pk_bf16_f32 v{P01}, v{S0}, v{S0+1}'); p(f'v_cvt_pk_bf16_f32 v{P01+1}, v{S0+2}, v{S0+3}')
    p(f'v_cvt_pk_bf16_f32 v{P01+2}, v{S1}, v{S1+1}'); p(f'v_cvt_pk_bf16_f32 v{P01+3}, v{S1+2}, v{S1+3}')
    p(f'v_cvt_pk_bf16_f32 v{PZ}, v{S2}, v{S2+1}'); p(f'v_cvt_pk_bf16_f32 v{PZ+3}, v{S2}, v{S2+1}')
    LA, OA = QOP + 4, KA
    p('s_waitcnt lgkmcnt(0)')
    p(M32(LA, ONES, P01, '0'))
    for k in range(4): p(M32(OA + 4 * k, VF + 4 * k, P01, '0'))
    p(M16(LA, ONES, PZ, LA))
    for k in range(4): p(M16(OA + 4 * k, VMR + 2 * (k >> 1), PZ + 2 * (k & 1), OA + 4 * k))
    p(f'v_rcp_f32 v{T0}, v{LA}')
    for k in range(16): p(f'v_mul_f32 v{OA+k}, v{OA+k}, v{T0}')
    for i in range(2):
        a0, a1 = OA + 8 * i, OA + 8 * i + 4
        p(f'v_cvt_pk_bf16_f32 v{a0}, v{a0}, v{a0+1}'); p(f'v_cvt_pk_bf16_f32 v{a0+1}, v{a0+2}, v{a0+3}')
        p(f'v_cvt_pk_bf16_f32 v{a0+2}, v{a1}, v{a1+1}'); p(f'v_cvt_pk_bf16_f32 v{a0+3}, v{a1+2}, v{a1+3}')
        p(f'ds_write_b128 v{vOw}, {v(a0,4)} offset:{(P_OX & 65535)+i*1024}')
    p('s_waitcnt lgkmcnt(0)')
    p('s_barrier')
    OF = W0 + 2 - 2
    for k in range(8): p(f'ds_read_b128 {v(OF+4*k,4)}, v{vL16h} offset:{(P_OX & 65535)+k*1024}')
    p('s_waitcnt lgkmcnt(0)')
    out_gemm(p, st, WO, 4, lambda tt, ks: OF + 4 * (tt * 4 + ks), sSt)
    D, RB, T = W0 + 34, W0, W0 + 40
    gather_reduce(p, f'a{tg}', sR2, 8, D, RB)
    NEG = W0 + 48
    for k in range(4): p(f'v_mov_b32 v{NEG+k}, -1')
    resets(p, st, sR2, 8, NEG)
    p(f's_mov_b64 exec, s[{sM32}:{sM32+1}]')
    p(f'v_cvt_pk_bf16_f32 v{D}, v{D}, v{D+1}'); p(f'v_cvt_pk_bf16_f32 v{D+1}, v{D+2}, v{D+3}')
    for d in range(2):
        for x in unpack2(RB + 2 * d, RB + 2 * d + 1, D + d): p(x)
        for x in unpack2(X1 + 2 * d, X1 + 2 * d + 1, XIN + d): p(x)
    for k in range(4): p(f'v_fmac_f32 v{X1+k}, v{RB+k}, v{GA+k}')
    p(f'v_cvt_pk_bf16_f32 v{D}, v{X1}, v{X1+1}'); p(f'v_cvt_pk_bf16_f32 v{D+1}, v{X1+2}, v{X1+3}')
    for d in range(2):
        for x in unpack2(X1 + 2 * d, X1 + 2 * d + 1, D + d): p(x)
    sm = RB + 8
    p(f'v_add_f32 v{sm}, v{X1}, v{X1+1}'); p(f'v_add_f32 v{sm}, v{sm}, v{X1+2}'); p(f'v_add_f32 v{sm}, v{sm}, v{X1+3}')
    rowsum(p, sm, RB + 10, 0)
    p(f'v_mul_f32 v{sm}, {f32(1/512):#x}, v{sm}')
    for k in range(4): p(f'v_sub_f32 v{RB+k}, v{X1+k}, v{sm}')
    p(f'v_mul_f32 v{sm}, v{RB}, v{RB}')
    for k in range(1, 4): p(f'v_fmac_f32 v{sm}, v{RB+k}, v{RB+k}')
    rowsum(p, sm, RB + 10, 1)
    p(f'v_mov_b32 v{sm+1}, {f32(1e-5):#x}')
    p(f'v_fmac_f32 v{sm+1}, {f32(1/512):#x}, v{sm}')
    p(f'v_rsq_f32 v{sm}, v{sm+1}')
    for k in range(4): p(f'v_mul_f32 v{RB+k}, v{RB+k}, v{sm}')
    for k in range(4): p(f'v_fma_f32 v{RB+k}, v{RB+k}, v{C1B+k}, v{SB+k}')
    p(f'v_cvt_pk_bf16_f32 v{D}, v{RB}, v{RB+1}'); p(f'v_cvt_pk_bf16_f32 v{D+1}, v{RB+2}, v{RB+3}')
    p(f'buffer_store_dwordx2 {v(D,2)}, v{vHP}, {srd(S_WS)}, s{sHP} offen {st}')
    p('s_mov_b64 exec, -1')
    p(f's_cmp_ge_u32 s{sH}, 28')
    p(f's_cbranch_scc1 L_nomlp_{tg}')
    p(f's_lshl_b32 s{sT2}, s{sW}, 13')
    p(f's_add_u32 s{sT3}, s{sT2}, s{sTB}')
    p(f's_add_u32 s{sT3}, s{sT3}, {T_H2}')
    p(f's_add_u32 s{sT4}, s{sT3}, 4096')
    p(f'v_add_u32 v{T}, s{sT2}, v{vL16h}')
    p.label(f'L_h2_{tg}')
    for u in range(8):
        p(f'buffer_load_dwordx4 {v(RB+4*u,4)}, v{vL16}, {srd(S_WS)}, s{sT3 if u < 4 else sT4} offen offset:{(u%4)*1024} sc1')
    spin(p)
    p('s_waitcnt vmcnt(0)')
    p(f'v_max3_u32 v{D}, v{RB}, v{RB+1}, v{RB+2}')
    for k in range(3, 31, 2): p(f'v_max3_u32 v{D}, v{D}, v{RB+k}, v{RB+k+1}')
    p(f'v_max_u32 v{D}, v{D}, v{RB+31}')
    p(f'v_cmp_eq_u32 vcc, -1, v{D}')
    p(f's_cbranch_vccnz L_h2_{tg}')
    for u in range(8): p(f'ds_write_b128 v{T}, {v(RB+4*u,4)} offset:{(P_H2 & 65535)+u*1024}')
    p('s_waitcnt lgkmcnt(0)')
    p('s_barrier')
    HA = [W0 + 24, W0 + 28]
    for x in hrd(0, P_H2) + hrd(1, P_H2): p(x)
    for ks in range(16):
        if ks + 2 < 16:
            for x in hrd(ks + 2, P_H2): p(x)
            p('s_waitcnt lgkmcnt(4)')
        else: p(f's_waitcnt lgkmcnt({2 if ks == 14 else 0})')
        for tt in range(2):
            p(M32(HA[tt], W1(ks), HFR[ks % 3] + 4 * tt, B1 if ks == 0 else HA[tt]))
    k0 = -2.0 * math.log2(math.e) * math.sqrt(2.0 / math.pi)
    p(f's_mov_b32 s{sT1}, {f32(k0 * 0.044715):#x}')
    G = W0 + 32
    p(f'v_mov_b32 v{G+8}, {f32(k0):#x}')
    xs = [HA[0] + k for k in range(4)] + [HA[1] + k for k in range(4)]
    for k, x in enumerate(xs): p(f'v_mul_f32 v{G+k}, v{x}, v{x}')
    for k, x in enumerate(xs): p(f'v_fma_f32 v{G+k}, v{G+k}, s{sT1}, v{G+8}')
    for k, x in enumerate(xs): p(f'v_mul_f32 v{G+k}, v{G+k}, v{x}')
    for k, x in enumerate(xs): p(f'v_exp_f32 v{G+k}, v{G+k}')
    for k, x in enumerate(xs): p(f'v_add_f32 v{G+k}, 1.0, v{G+k}')
    for k, x in enumerate(xs): p(f'v_rcp_f32 v{G+k}, v{G+k}')
    for k, x in enumerate(xs): p(f'v_mul_f32 v{x}, v{x}, v{G+k}')
    for tt in range(2):
        a0 = HA[tt]
        p(f'v_cvt_pk_bf16_f32 v{a0}, v{a0}, v{a0+1}'); p(f'v_cvt_pk_bf16_f32 v{a0+1}, v{a0+2}, v{a0+3}')
        p(f'ds_write_b64 v{vHidw}, {v(a0,2)} offset:{tt*2048}')
    p('s_waitcnt lgkmcnt(0)')
    p('s_barrier')
    for k in range(4): p(f'ds_read_b128 {v(OF+4*k,4)}, v{vL16h} offset:{(P_HID & 65535)+k*1024}')
    p(f's_add_u32 s{sT4}, s{sSt}, {T_P3}')
    p('s_waitcnt lgkmcnt(0)')
    out_gemm(p, st, W2, 2, lambda tt, ks: OF + 4 * (tt * 2 + ks), sT4)
    p.label(f'L_nomlp_{tg}')
    gather_reduce(p, f'b{tg}', sR3, 7, D, RB)
    for k in range(4): p(f'v_mov_b32 v{NEG+k}, -1')
    p(f's_mov_b64 exec, s[{sM32}:{sM32+1}]')
    for k in range(4): p(f'v_add_f32 v{D+k}, v{D+k}, v{B2+k}')
    for k in range(4): p(f'v_fmac_f32 v{X1+k}, v{D+k}, v{GB+k}')
    p(f'v_cvt_pk_bf16_f32 v{D}, v{X1}, v{X1+1}'); p(f'v_cvt_pk_bf16_f32 v{D+1}, v{X1+2}, v{X1+3}')
    p(f'buffer_store_dwordx2 {v(D,2)}, v{vCol}, {srd(S_OUT)}, s{sXo} offen')
    p(f'buffer_store_dwordx2 {v(NEG,2)}, v{vHP}, {srd(S_WS)}, s{sHP} offen {st}')
    p('s_mov_b64 exec, -1')
    resets(p, st, sR3, 7, NEG)
    p(f's_add_u32 s{sSeg}, s{sSeg}, {NPOST}')
    p(f's_cmp_lt_u32 s{sSeg}, 64')
    p(f's_cbranch_scc1 L_post_{tg}')
    p('s_branch L_end')
```

```python
from common import *

def staged_load(p, n, issue, consume, per=4, nslots=8):
    depth = nslots - 1
    for c in range(min(depth, n)): issue(c, c % nslots)
    for c in range(n):
        issued = min(c + depth - 1, n - 1)
        p(f's_waitcnt vmcnt({(issued - c) * per})')
        p('s_barrier')
        if c + depth < n: issue(c + depth, (c + depth) % nslots)
        consume(c, c % nslots)
        p('s_waitcnt lgkmcnt(0)')
    p('s_barrier')

def set_m0(p, slot):
    p(f's_lshl_b32 s{sT0}, s{sW}, 12')
    p(f's_add_u32 s{sT0}, s{sT0}, {slot*16384}')
    p(f's_mov_b32 m0, s{sT0}')

def issue_headmat(p, S, i, slot, vsrc):
    set_m0(p, slot)
    p(f's_lshl_b32 s{sT1}, s{sW}, 17')
    p(f's_lshl_b32 s{sT2}, s{sH}, 8')
    p(f's_add_u32 s{sT1}, s{sT1}, s{sT2}')
    p(f's_add_u32 s{sT1}, s{sT1}, {64*i*8192}')
    for zz in range(4):
        p(f'buffer_load_dwordx4 v{vsrc}, {srd(S)}, s{sT1} offen offset:{zz*1024} lds')
        if zz < 3: p(f's_add_u32 s{sT1}, s{sT1}, {4*8192-1024}')

def issue_linear(p, S, sbase, off, slot, vL16):
    set_m0(p, slot)
    p(f's_lshl_b32 s{sT2}, s{sW}, 12')
    p(f's_add_u32 s{sT1}, s{sbase}, s{sT2}')
    p(f's_add_u32 s{sT1}, s{sT1}, {off}')
    for zz in range(4):
        p(f'buffer_load_dwordx4 v{vL16}, {srd(S)}, s{sT1} offen offset:{zz*1024} lds')

def lane_ids(p, base):
    l, n, g, r, c = range(base, base + 5)
    p(f'v_and_b32 v{l}, 63, v0')
    p(f'v_and_b32 v{n}, 15, v0')
    p(f'v_lshrrev_b32 v{g}, 4, v{l}')
    p(f'v_lshrrev_b32 v{r}, 2, v{n}')
    p(f'v_and_b32 v{c}, 3, v0')
    return l, n, g, r, c

def mod_task(p, sT):
    build_srd(p, 8, 96, 1024)
    build_srd(p, 12, 104, 512 * 3072 * 2)
    p('s_waitcnt lgkmcnt(0)')
    p('v_lshlrev_b32 v1, 2, v0')
    p(f'buffer_load_dword v2, v1, {srd(8)}, 0 offen')
    p('v_lshrrev_b32 v3, 3, v0')
    p('v_mul_u32_u24 v3, 6144, v3')
    p('v_and_b32 v4, 7, v0')
    p('v_lshl_add_u32 v3, v4, 4, v3')
    p(f's_lshl_b32 s{sT1}, s{sT}, 7')
    for i in range(16):
        p(f'buffer_load_dwordx4 {v(32+4*i,4)}, v3, {srd(12)}, s{sT1} offen')
        if i < 15: p(f's_add_u32 s{sT1}, s{sT1}, {32*6144}')
    p('s_waitcnt vmcnt(16)')
    for x in unpack2(4, 5, 2): p(x)
    k = f32(-math.log2(math.e))
    for r in (4, 5):
        p(f'v_mul_f32 v{r+2}, {k:#x}, v{r}')
        p(f'v_exp_f32 v{r+2}, v{r+2}')
        p(f'v_add_f32 v{r+2}, 1.0, v{r+2}')
        p(f'v_rcp_f32 v{r+2}, v{r+2}')
        p(f'v_mul_f32 v{r}, v{r}, v{r+2}')
    p('v_cvt_pk_bf16_f32 v2, v4, v5')
    for x in unpack2(4, 5, 2): p(x)
    p('v_lshlrev_b32 v6, 3, v0')
    p('ds_write_b64 v6, v[4:5]')
    p('s_waitcnt lgkmcnt(0)')
    p('s_barrier')
    p('v_lshrrev_b32 v6, 3, v0')
    p('v_lshlrev_b32 v6, 2, v6')
    for i in range(16):
        p(f'ds_read_b32 v{16+i}, v6 offset:{i*128}')
    for j in range(8): p(f'v_mov_b32 v{8+j}, 0')
    p('s_waitcnt lgkmcnt(0)')
    for i in range(16):
        p(f's_waitcnt vmcnt({15-i})')
        for d in range(4):
            for x in unpack2(4, 5, 32 + 4 * i + d): p(x)
            p(f'v_fmac_f32 v{8+2*d}, v4, v{16+i}')
            p(f'v_fmac_f32 v{9+2*d}, v5, v{16+i}')
    p('v_lshlrev_b32 v6, 5, v0')
    p('ds_write_b128 v6, v[8:11] offset:4096')
    p('ds_write_b128 v6, v[12:15] offset:4112')
    p('s_waitcnt lgkmcnt(0)')
    p('s_barrier')
    u = uid()
    p(f's_cmp_lg_u32 s{sW}, 0')
    p(f's_cbranch_scc1 L_mt{u}')
    for i in range(32):
        p(f'ds_read_b32 v{16+i}, v1 offset:{4096+i*256}')
        if i % 8 == 7:
            p('s_waitcnt lgkmcnt(0)')
    for i in range(1, 32): p(f'v_add_f32 v16, v16, v{16+i}')
    p('v_cvt_pk_bf16_f32 v16, v16, v16')
    p(f's_lshr_b32 s{sT1}, s{sT}, 3')
    p(f's_cmp_eq_u32 s{sT1}, 1')
    p(f's_cselect_b32 s{sT2}, 1.0, 0')
    p(f's_cmp_eq_u32 s{sT1}, 4')
    p(f's_cselect_b32 s{sT2}, 1.0, s{sT2}')
    p('v_lshlrev_b32 v16, 16, v16')
    p(f'v_add_f32 v16, s{sT2}, v16')
    p('v_cvt_pk_bf16_f32 v16, v16, v16')
    p('v_lshlrev_b32 v6, 1, v0')
    p(f's_lshl_b32 s{sT1}, s{sT}, 7')
    p(f's_add_u32 s{sT1}, s{sT1}, {WS_MOD}')
    p(f'buffer_store_short v16, v6, {srd(S_WS)}, s{sT1} offen sc1')
    p('s_waitcnt vmcnt(0)')
    p(f's_cmp_lt_u32 s{sT}, 16')
    p(f's_cselect_b32 s{sT1}, {D_MODA*4}, {D_MODB*4}')
    p('s_mov_b64 exec, 1')
    p('v_mov_b32 v6, 1')
    p(f'buffer_atomic_add v6, off, {srd(S_DBG)}, s{sT1}')
    p('s_mov_b64 exec, -1')
    p.label(f'L_mt{u}')
    p('s_barrier')

def ln1_task(p, sT):
    build_srd(p, 8, 0, 2 * MB)
    l, n, g, r, c = lane_ids(p, 1)
    p(f'v_lshlrev_b32 v6, 10, v{n}')
    p(f'v_lshl_add_u32 v6, v{g}, 4, v6')
    p(f's_lshl_b32 s{sT1}, s{sT}, 14')
    p(f's_lshl_b32 s{sT2}, s{sW}, 8')
    p(f's_add_u32 s{sT1}, s{sT1}, s{sT2}')
    p('s_waitcnt lgkmcnt(0)')
    for k in range(4):
        p(f'buffer_load_dwordx4 {v(16+4*k,4)}, v6, {srd(8)}, s{sT1} offen offset:{k*64}')
    X = 32
    for k in range(4):
        p(f's_waitcnt vmcnt({3-k})')
        for d in range(4):
            for x in unpack2(X + 8 * k + 2 * d, X + 8 * k + 2 * d + 1, 16 + 4 * k + d): p(x)
    def reduce(val, slot):
        xsum4(p, val, 9)
        p(f's_lshl_b32 s{sT2}, s{sW}, 6')
        p(f'v_lshlrev_b32 v9, 2, v{n}')
        p(f'v_add_u32 v10, s{sT2}, v9')
        p(f'ds_write_b32 v10, v{val} offset:{slot*256}')
        p('s_waitcnt lgkmcnt(0)')
        p('s_barrier')
        for k in range(4): p(f'ds_read_b32 v{12+k}, v9 offset:{slot*256+k*64}')
        p('s_waitcnt lgkmcnt(0)')
        p(f'v_add_f32 v12, v12, v13'); p(f'v_add_f32 v14, v14, v15'); p(f'v_add_f32 v{val}, v12, v14')
    p(f'v_add_f32 v8, v{X}, v{X+1}')
    for k in range(2, 32): p(f'v_add_f32 v8, v8, v{X+k}')
    reduce(8, 0)
    p(f'v_mul_f32 v8, {f32(1/512):#x}, v8')
    for k in range(32): p(f'v_sub_f32 v{X+k}, v{X+k}, v8')
    p(f'v_mul_f32 v8, v{X}, v{X}')
    for k in range(1, 32): p(f'v_fmac_f32 v8, v{X+k}, v{X+k}')
    reduce(8, 1)
    p(f'v_mov_b32 v9, {f32(1e-5):#x}')
    p(f'v_fmac_f32 v9, {f32(1/512):#x}, v8')
    p(f'v_rsq_f32 v8, v9')
    wait_ge(p, S_DBG, '0', D_MODA * 4, 16, 9)
    p(f'v_lshlrev_b32 v7, 4, v{g}')
    p(f's_lshl_b32 s{sT2}, s{sW}, 8')
    p(f's_add_u32 s{sT2}, s{sT2}, {WS_MOD}')
    for k in range(4):
        p(f'buffer_load_dwordx4 {v(64+4*k,4)}, v7, {srd(S_WS)}, s{sT2} offen offset:{k*64} sc1')
        p(f'buffer_load_dwordx4 {v(80+4*k,4)}, v7, {srd(S_WS)}, s{sT2} offen offset:{1024+k*64} sc1')
    for k in range(32): p(f'v_mul_f32 v{X+k}, v{X+k}, v8')
    p(f'v_lshlrev_b32 v7, 4, v{l}')
    p(f's_lshl_b32 s{sT1}, s{sT}, 14')
    p(f's_lshl_b32 s{sT2}, s{sW}, 12')
    p(f's_add_u32 s{sT1}, s{sT1}, s{sT2}')
    p(f's_add_u32 s{sT1}, s{sT1}, {WS_HF}')
    p('s_waitcnt vmcnt(0)')
    for k in range(4):
        for d in range(4):
            for x in unpack2(10, 11, 64 + 4 * k + d): p(x)
            for x in unpack2(12, 13, 80 + 4 * k + d): p(x)
            p(f'v_fmac_f32 v10, v{X+8*k+2*d}, v12')
            p(f'v_fmac_f32 v11, v{X+8*k+2*d+1}, v13')
            p(f'v_cvt_pk_bf16_f32 v{16+4*k+d}, v10, v11')
        p(f'buffer_store_dwordx4 {v(16+4*k,4)}, v7, {srd(S_WS)}, s{sT1} offen offset:{k*1024} sc1')
    p('s_waitcnt vmcnt(0)')
    p('s_barrier')
    dbg_add(p, D_LN1, 9, 10)

def tr_bases(p, dst, rowmul_shift, natural, wshift, cshift, ids, tmp):
    l, n, g, r, c = ids
    p(f'v_lshl_add_u32 v{tmp}, v{g}, {3 if natural else 2}, v{r}')
    p(f'v_lshlrev_b32 v{tmp}, {rowmul_shift}, v{tmp}')
    p(f'v_lshl_add_u32 v{tmp}, v{c}, {cshift}, v{tmp}')
    p(f's_lshl_b32 s{sT0}, s{sW}, {wshift}')
    p(f'v_add_u32 v{dst}, s{sT0}, v{tmp}')
    p(f'v_add_u32 v{dst+1}, 0x10000, v{dst}')

def consume_headmat(p, i, slot, base_pair, pair, reg0):
    b = base_pair + (slot >= 4)
    for ksl in range(2):
        for t in range(2):
            for hf in range(2):
                imm = (slot % 4) * 16384 + (32 * ksl + 4 * hf) * 256 + (8 * t if pair else 32 * t)
                p(f'ds_read_b64_tr_b16 {R(reg0 + (t*16 + 2*i + ksl)*4 + 2*hf, 2)}, v{b} offset:{imm}')

def kv_role(p):
    build_srd(p, 8, 24, 4 * MB)
    build_srd(p, 12, 32, 4 * MB)
    ids = lane_ids(p, 100)
    l, n, g, r, c = ids
    vL16, vSrc, bP, bN = 1, 2, 4, 6
    p(f'v_lshlrev_b32 v{vL16}, 4, v{l}')
    p(f'v_lshlrev_b32 v{vSrc}, 13, v{g}')
    p(f'v_lshl_add_u32 v{vSrc}, v{n}, 4, v{vSrc}')
    tr_bases(p, bP, 8, True, 6, 4, ids, 105)
    tr_bases(p, bN, 8, True, 6, 3, ids, 105)
    p('s_waitcnt lgkmcnt(0)')
    staged_load(p, 16, lambda c_, sl: issue_headmat(p, 8 if c_ < 8 else 12, c_ % 8, sl, vSrc),
                lambda c_, sl: consume_headmat(p, c_ % 8, sl, bP if c_ < 8 else bN, c_ < 8, 256 + (0 if c_ < 8 else 128)))
    wait_ge(p, S_DBG, '0', D_LN1 * 4, 128, 9)
    sSeg, sPrev, sBuf, sO = 35, 36, 37, 38
    def hdma():
        p(f's_lshl_b32 s{sT1}, s{sSeg}, 15')
        p(f's_lshl_b32 s{sT2}, s{sW}, 13')
        p(f's_add_u32 s{sT1}, s{sT1}, s{sT2}')
        p(f's_add_u32 s{sT1}, s{sT1}, {WS_HF}')
        p(f's_add_u32 s{sT2}, s{sT2}, s{sBuf}')
        for q in range(2):
            p(f's_mov_b32 m0, s{sT2}')
            p('s_nop 0')
            for zz in range(4):
                p(f'buffer_load_dwordx4 v{vL16}, {srd(S_WS)}, s{sT1} offen offset:{zz*1024} sc1 lds')
            if q == 0:
                p(f's_add_u32 s{sT1}, s{sT1}, 4096'); p(f's_add_u32 s{sT2}, s{sT2}, 4096')
    def flag():
        u = uid()
        p(f's_cmp_lg_u32 s{sW}, 0')
        p(f's_cbranch_scc1 L_kf{u}')
        p(f's_cmp_ge_u32 s{sPrev}, 64')
        p(f's_cbranch_scc1 L_kf{u}')
        p(f's_lshl_b32 s{sT1}, s{sH}, 6')
        p(f's_add_u32 s{sT1}, s{sT1}, s{sPrev}')
        p(f's_lshl_b32 s{sT1}, s{sT1}, 2')
        p(f's_add_u32 s{sT1}, s{sT1}, {WS_FKV}')
        p('s_mov_b64 exec, 1')
        p('v_mov_b32 v9, 1')
        p(f'buffer_store_dword v9, off, {srd(S_WS)}, s{sT1} sc1')
        p('s_mov_b64 exec, -1')
        p.label(f'L_kf{u}')
    p(f's_sub_u32 s{sSeg}, s{sTeam}, 1')
    p(f's_mov_b32 s{sPrev}, 64')
    p(f's_mov_b32 s{sBuf}, 0')
    hdma()
    vH = 3
    p.label('L_kv_loop')
    p('s_waitcnt vmcnt(0)')
    p('s_barrier')
    flag()
    p(f'v_add_u32 v{vH}, s{sBuf}, v{vL16}')
    p(f's_mov_b32 s{sPrev}, s{sSeg}')
    p(f's_add_u32 s{sSeg}, s{sSeg}, {NKV}')
    p(f's_xor_b32 s{sBuf}, s{sBuf}, 32768')
    p(f's_cmp_ge_u32 s{sSeg}, 64')
    p('s_cbranch_scc1 L_kv_nodma')
    hdma()
    p.label('L_kv_nodma')
    HFR = [16, 24, 32]
    KA = [[48, 52], [56, 60]]; VA = [[64, 68], [72, 76]]
    def hrd(ks):
        s_ = HFR[ks % 3]
        return [f'ds_read_b128 {v(s_,4)}, v{vH} offset:{ks*1024}', f'ds_read_b128 {v(s_+4,4)}, v{vH} offset:{16384+ks*1024}']
    for x in hrd(0) + hrd(1): p(x)
    for ks in range(16):
        if ks + 2 < 16:
            for x in hrd(ks + 2): p(x)
            p('s_waitcnt lgkmcnt(4)')
        else:
            p(f's_waitcnt lgkmcnt({2 if ks == 14 else 0})')
        s_ = HFR[ks % 3]
        for rt in range(2):
            for t in range(2):
                p(M32(KA[rt][t], 256 + (t * 16 + ks) * 4, s_ + 4 * rt, '0' if ks == 0 else KA[rt][t]))
        for rt in range(2):
            for d in range(2):
                p(M32(VA[rt][d], s_ + 4 * rt, 256 + 128 + (d * 16 + ks) * 4, '0' if ks == 0 else VA[rt][d]))
    p(f's_lshl_b32 s{sO}, s{sPrev}, 5')
    p(f's_add_u32 s{sO}, s{sO}, s{sH}')
    p(f's_lshl_b32 s{sO}, s{sO}, 14')
    p(f's_lshl_b32 s{sT1}, s{sW}, 10')
    p(f's_add_u32 s{sT2}, s{sO}, s{sT1}')
    p(f's_add_u32 s{sT3}, s{sT2}, 4096')
    p(f's_add_u32 s{sT4}, s{sT2}, s{sT1}')
    p(f's_add_u32 s{sT4}, s{sT4}, 8192')
    O = 80
    for rt in range(2):
        for t in range(2):
            p(f'v_cvt_pk_bf16_f32 v{O+4*rt+2*t}, v{KA[rt][t]}, v{KA[rt][t]+1}')
            p(f'v_cvt_pk_bf16_f32 v{O+4*rt+2*t+1}, v{KA[rt][t]+2}, v{KA[rt][t]+3}')
        p(f'buffer_store_dwordx4 {v(O+4*rt,4)}, v{vL16}, {srd(S_WS)}, s{sT2 if rt == 0 else sT3} offen sc1')
    for d in range(2):
        for rt in range(2):
            p(f'v_cvt_pk_bf16_f32 v{O+8+4*d+2*rt}, v{VA[rt][d]}, v{VA[rt][d]+1}')
            p(f'v_cvt_pk_bf16_f32 v{O+8+4*d+2*rt+1}, v{VA[rt][d]+2}, v{VA[rt][d]+3}')
        p(f'buffer_store_dwordx4 {v(O+8+4*d,4)}, v{vL16}, {srd(S_WS)}, s{sT4} offen offset:{d*1024} sc1')
    p(f's_cmp_lt_u32 s{sSeg}, 64')
    p('s_cbranch_scc1 L_kv_loop')
    p('s_waitcnt vmcnt(0)')
    p('s_barrier')
    flag()
    p('s_branch L_end')
```

```python
import sys
from common import *
import chain3, roles, post
NAME = 'adaLN_cond__memory_aug_recurrent_mem_tr__dense_activation_gelu__prompt'
FORCE_SLOW = int(os.environ.get('FORCE_SLOW', 0))
LIGHT = int(os.environ.get('LIGHT', 0))
PROF = int(os.environ.get('PROF', 0))
sG, sX, sId = 62, 63, 68

def build():
    p = Prog()
    p('s_cmp_ge_u32 s2, 256')
    p('s_cbranch_scc1 L_end')
    if LIGHT: p('s_memrealtime s[92:93]')
    build_srd(p, S_WS, 128, WS_SIZE)
    build_srd(p, S_DBG, 120, 256)
    p('v_lshrrev_b32 v1, 6, v0')
    p(f's_mov_b32 s{sSpin}, 0')
    p(f'v_readfirstlane_b32 s{sW}, v1')
    p(f's_getreg_b32 s{sX}, hwreg(HW_REG_XCC_ID)')
    p(f's_and_b32 s{sX}, s{sX}, 7')
    p('v_mov_b32 v2, 0')
    p('s_waitcnt lgkmcnt(0)')
    p(f's_cmp_lg_u32 s{sW}, 0')
    p('s_cbranch_scc1 L_arr')
    p('s_mov_b64 exec, 0xff')
    for k in range(4): p(f'v_mov_b32 v{4+k}, 0')
    p('v_lshlrev_b32 v3, 4, v0')
    p(f's_lshl_b32 s{sT0}, s2, 7')
    p(f's_add_u32 s{sT0}, s{sT0}, {WS_FKV}')
    p(f'buffer_store_dwordx4 v[4:7], v3, {srd(S_WS)}, s{sT0} offen sc1')
    p('s_mov_b64 exec, 1')
    p('v_mov_b32 v4, 1')
    p('v_mov_b32 v5, 1')
    p(f's_lshl_b32 s{sT0}, s{sX}, 2')
    p(f'buffer_atomic_add v4, off, {srd(S_DBG)}, s{sT0} sc0')
    p('s_waitcnt vmcnt(0)')
    p(f'buffer_atomic_add v5, off, {srd(S_DBG)}, 0 offset:{D_ALL*4} sc0')
    p('s_waitcnt vmcnt(0)')
    p('ds_write_b64 v2, v[4:5]')
    p('s_mov_b64 exec, -1')
    wait_ge(p, S_DBG, '0', D_ALL * 4, 256, 6, sleep=1)
    p('v_and_b32 v3, 7, v0')
    p('v_lshlrev_b32 v3, 2, v3')
    p(f'buffer_load_dword v6, v3, {srd(S_DBG)}, 0 offen sc1')
    p('s_waitcnt vmcnt(0)')
    p('v_cmp_ne_u32 vcc, 32, v6')
    p('s_cmp_lg_u64 vcc, 0')
    p(f's_cselect_b32 s{sT0}, 1, {FORCE_SLOW}')
    p(f'v_mov_b32 v6, s{sT0}')
    p('ds_write_b32 v2, v6 offset:8')
    p('s_waitcnt lgkmcnt(0)')
    p.label('L_arr')
    p('s_barrier')
    p('ds_read_b96 v[4:6], v2')
    p('s_waitcnt lgkmcnt(0)')
    p(f'v_readfirstlane_b32 s{sH}, v4')
    p(f'v_readfirstlane_b32 s{sG}, v5')
    p(f'v_readfirstlane_b32 s{sMode}, v6')
    p('s_barrier')
    p(f's_mov_b32 s{sTeam}, s{sX}')
    p(f's_cmp_eq_u32 s{sMode}, 0')
    p('s_cbranch_scc1 L_roles')
    p(f's_lshr_b32 s{sTeam}, s{sG}, 5')
    p(f's_and_b32 s{sH}, s{sG}, 31')
    p.label('L_roles')
    p(f's_cmp_eq_u32 s{sTeam}, 0')
    p('s_cbranch_scc1 L_chain')
    p(f's_sub_u32 s{sId}, s{sTeam}, 1')
    p(f's_lshl_b32 s{sId}, s{sId}, 5')
    p(f's_add_u32 s{sId}, s{sId}, s{sH}')
    p(f's_cmp_lt_u32 s{sId}, 48')
    p('s_cbranch_scc1 L_p0_done')
    p(f's_cmp_ge_u32 s{sId}, 96')
    p('s_cbranch_scc1 L_p0_ln')
    p(f's_sub_u32 s{sId}, s{sId}, 48')
    roles.mod_task(p, sId)
    p('s_branch L_p0_done')
    p.label('L_p0_ln')
    p(f's_sub_u32 s{sId}, s{sId}, 96')
    roles.ln1_task(p, sId)
    p('s_barrier')
    p.label('L_p0_done')
    p(f's_cmp_gt_u32 s{sTeam}, {NKV}')
    p('s_cbranch_scc1 L_postrole')
    roles.kv_role(p)
    p.label('L_postrole')
    H = post.post_setup(p)
    p(f's_cmp_lg_u32 s{sMode}, 0')
    p('s_cbranch_scc1 L_pi_s')
    post.post_init_rings(p, '')
    p('s_branch L_pi_d')
    p.label('L_pi_s')
    post.post_init_rings(p, 'sc1')
    p.label('L_pi_d')
    post.post_weights(p, H)
    p(f's_cmp_lg_u32 s{sMode}, 0')
    p('s_cbranch_scc1 L_pl_s')
    post.post_loop(p, '')
    p.label('L_pl_s')
    post.post_loop(p, 'sc1')
    p.label('L_chain')
    chain3.chain_role(p, PROF, LIGHT)
    p.label('L_end')
    p('s_endpgm')
    return p

def emit(path):
    p = build()
    n = p.fix_hazards()
    ins = p.ins
    errs = []
    for m in 'fs':
        for w in range(4):
            t = f'w{w}{m}'
            errs += check_waits(make_trace(ins, f'L_step_{t}', taken=(f'L_paok_{t}', f'L_bgot_{t}')), t)
            errs += check_waits(make_trace(ins, f'L_step_{t}', taken=(f'L_paok_{t}', f'L_prok_{t}', f'L_bok1_{t}')), t)
        errs += check_waits(make_trace(ins, f'L_post_{m}', taken=(f'L_post_{m}', f'L_gok_a{m}', f'L_gok_b{m}')), 'post')
    errs += check_waits(make_trace(ins, 'L_kv_loop', taken=('L_kv_loop',)), 'kv')
    errs += check_waits(make_trace(ins, 'L_chain', stop=('L_step_w0f',)), 'chainpro')
    errs += check_waits(make_trace(ins, 'L_postrole', stop=('L_post_f',)), 'postpro')
    errs += check_waits(make_trace(ins, None, stop=('L_kv_loop',)), 'pro')
    errs += check_waits(make_trace(ins, 'L_p0_ln', stop=('L_kv_loop',)), 'ln')
    for e in errs[:20]: print(e)
    body = '\n'.join(x.text for x in ins)
    hdr = open('cdna_kernels/' + NAME + '.s.ref').read().split('; Override launch')[0]
    txt = hdr + f'''; Generated by a Python generator (hand-designed persistent kernel: teams of 32 workgroups per XCD).
; @launch grid=(256,1,1) block=(256,1,1) lds={LDS_BYTES}
.amdgcn_target "amdgcn-amd-amdhsa--gfx950"
.text
.globl {NAME}_kernel
.p2align 8
.type {NAME}_kernel,@function
{NAME}_kernel:
{body}
.section .rodata,"a"
.p2align 6
.amdhsa_kernel {NAME}_kernel
  .amdhsa_next_free_vgpr 512
  .amdhsa_next_free_sgpr 102
  .amdhsa_accum_offset 256
  .amdhsa_group_segment_fixed_size 0
  .amdhsa_kernarg_size 136
  .amdhsa_user_sgpr_count 2
  .amdhsa_user_sgpr_kernarg_segment_ptr 1
  .amdhsa_system_sgpr_workgroup_id_x 1
.end_amdhsa_kernel
'''
    open(path, 'w').write(txt)
    print('instrs', len(ins), 'nops added', n, 'bytes', len(txt))

if __name__ == '__main__':
    emit(sys.argv[1] if len(sys.argv) > 1 else 'cdna_kernels/' + NAME + '.s')
```

```python
from common import *
import common

S_WS, S_WQ, S_WK, S_WV, S_WO, S_M0, S_DBG = 4, 8, 12, 16, 20, 24, 28
sH, sW, sS, sB = 32, 33, 34, 35
sM8 = 36
sC = 38
sT0, sT1, sT2, sT3, sT4 = 40, 41, 42, 43, 44
sPst, sMld, sPld, sPld2, sMstO, sExp, sSpin, sMrs, sPB = 45, 46, 47, 48, 49, 50, 51, 52, 53
sPP = 54
sH8, sPiece = 56, 57
sRdy, sFk, sFm = 60, 61, 62
sTS = 72
def srd(n): return f's[{n}:{n+3}]'
vL16, vHi, vIdx, vQw, vKw, vQr, vKr, vOw, vOr, vWo0, vWo1, vPst, vMst, vKV = range(1, 15)
vT0, vT1 = 0, 15
ONES, SEL, PZ = 16, 20, 24
MF = 28
def MFq(Q): return MF + 16 * (Q & 1) + 4 * (Q >> 1)
MFA, MFB = MF, MF + 16
Q0, Q1, K0, K1, V0, V1 = 60, 64, 68, 72, 76, 80
QOP = 84
X0 = 100
WOR = 112
def v(a, n=1): return f'v{a}' if n == 1 else f'v[{a}:{a+n-1}]'
def a_(a, n=1): return f'a{a}' if n == 1 else f'a[{a}:{a+n-1}]'
def Wq(t, i): return a_((t * 8 + i) * 8, 8)
def Wk(t, i): return a_(128 + (t * 8 + i) * 8, 8)
def Wv(t, i): return v(128 + (t * 8 + i) * 8, 8)
def S(acc, A, B): return f'v_smfmac_f32_16x16x64_bf16 {v(acc,4)}, {v(A,4)}, {B}, {v(vIdx)}'
def M32(D, A, B, C): return f'v_mfma_f32_16x16x32_bf16 {v(D,4)}, {v(A,4)}, {v(B,4)}, {C if C=="0" else v(C,4)}'
def M16(D, A, B, C): return f'v_mfma_f32_16x16x16_bf16 {v(D,4)}, {v(A,2)}, {v(B,2)}, {C if C=="0" else v(C,4)}'
import os
LAST = int(os.environ.get('LAST', 63))
NORESET = int(os.environ.get('NORESET', 0))
ODD_SLEEP = int(os.environ.get('ODD_SLEEP', 5))
NOEARLY = int(os.environ.get('NOEARLY', 0))
SINGLE = int(os.environ.get('SINGLE', 0))
OUT = os.environ.get('OUT', 'chain_test')
EV_SLEEP = int(os.environ.get('EV_SLEEP', 1))
CWAT = int(os.environ.get('CWAT', 24))
SOLO = int(os.environ.get('SOLO', 0))
SENT = 0 if SOLO else -1
SKIP = os.environ.get('SKIP', '').split(',')
BCHK = int(os.environ.get('BCHK', 13))
KBAR = int(os.environ.get('KBAR', 43))


tWsrc, tTr, tTr2, tTrO, tTrO2, tM0 = 60, 61, 62, 63, 64, 65
def lane_consts(p):
    l, n, g, t, g1, g0, t7, r, c, u = range(66, 76)
    p(f'v_and_b32 v{l}, 63, v0')
    p(f'v_and_b32 v{n}, 15, v0')
    p(f'v_lshrrev_b32 v{g}, 4, v{l}')
    p(f'v_lshlrev_b32 v{vL16}, 4, v{l}')
    p(f'v_add_u32 v{vHi}, {L_KVB}, v{vL16}')
    p(f'v_and_b32 v{t}, 1, v0')
    p(f'v_cmp_ne_u32 vcc, 0, v{t}')
    p(f'v_mov_b32 v{vIdx}, 0x4444')
    p(f'v_mov_b32 v{u}, 0xeeee')
    p(f'v_cndmask_b32 v{vIdx}, v{vIdx}, v{u}, vcc')
    p(f'v_lshrrev_b32 v{g1}, 1, v{g}')
    p(f'v_and_b32 v{g0}, 1, v{g}')
    p(f'v_and_b32 v{t7}, 7, v0')
    p(f'v_lshrrev_b32 v{r}, 2, v{n}')
    p(f'v_and_b32 v{c}, 3, v0')
    p(f's_lshl_b32 s{sT0}, s{sW}, 9')
    p(f'v_lshlrev_b32 v{t}, 4, v{n}')
    p(f'v_lshl_add_u32 v{t}, v{g}, 2, v{t}')
    p(f'v_add_u32 v{t}, s{sT0}, v{t}')
    p(f'v_add_u32 v{vQw}, {L_QX}, v{t}')
    p(f'v_lshlrev_b32 v{t}, 1, v{t}')
    p(f'v_add_u32 v{vKw}, {L_KX}, v{t}')
    p(f'v_lshl_add_u32 v{t}, v{g}, 3, v{r}')
    p(f'v_and_b32 v{u}, 1, v{c}')
    p(f'v_lshlrev_b32 v{u}, 3, v{u}')
    p(f'v_lshl_add_u32 v{u}, v{t}, 4, v{u}')
    p(f'v_add_u32 v{vQr}, {L_QX}, v{u}')
    p(f'v_lshlrev_b32 v{u}, 3, v{c}')
    p(f'v_lshl_add_u32 v{u}, v{t}, 5, v{u}')
    p(f'v_add_u32 v{vKr}, {L_KX}, v{u}')
    p(f'v_mul_u32_u24 v{u}, 272, v{t7}')
    p(f's_lshl_b32 s{sT0}, s{sW}, 6')
    p(f's_add_u32 s{sT0}, s{sT0}, {L_OX}')
    p(f'v_lshl_add_u32 v{t}, v{g}, 3, v{u}')
    p(f'v_add_u32 v{vOw}, s{sT0}, v{t}')
    p(f'v_lshrrev_b32 v{t}, 1, v{n}')
    p(f'v_mul_u32_u24 v{u}, 272, v{t}')
    p(f'v_lshl_add_u32 v{u}, v{g}, 5, v{u}')
    p(f'v_and_b32 v{t}, 1, v0')
    p(f'v_lshl_add_u32 v{u}, v{t}, 4, v{u}')
    p(f'v_add_u32 v{vOr}, {L_OX}, v{u}')
    p(f'v_lshrrev_b32 v{u}, 1, v{n}')
    p(f'v_lshlrev_b32 v{u}, 10, v{u}')
    p(f'v_lshl_add_u32 v{u}, v{g}, 5, v{u}')
    p(f'v_lshl_add_u32 v{tM0}, v{t}, 4, v{u}')
    p(f's_mul_i32 s{sT0}, s{sW}, 14336')
    p(f'v_add_u32 v{vWo0}, s{sT0}, v{vL16}')
    p(f'v_add_u32 v{vWo1}, {L_WO1}, v{vWo0}')
    p(f'v_lshlrev_b32 v{t}, 13, v{g}')
    p(f'v_lshl_add_u32 v{vPst}, v{n}, 4, v{t}')
    p(f'v_mov_b32 v{tWsrc}, v{vPst}')
    p(f'v_lshrrev_b32 v{t}, 1, v{t7}')
    p(f'v_lshlrev_b32 v{t}, 8, v{t}')
    p(f'v_and_b32 v{u}, 1, v0')
    p(f'v_lshl_add_u32 v{t}, v{u}, 5, v{t}')
    p(f'v_lshl_add_u32 v{t}, v{g1}, 4, v{t}')
    p(f'v_lshl_add_u32 v{vMst}, v{g0}, 3, v{t}')
    p(f'v_lshrrev_b32 v{t}, 1, v{r}')
    p(f'v_lshlrev_b32 v{t}, 3, v{t}')
    p(f'v_lshl_add_u32 v{t}, v{g1}, 4, v{t}')
    p(f'v_lshl_add_u32 v{t}, v{g0}, 2, v{t}')
    p(f'v_and_b32 v{u}, 1, v{r}')
    p(f'v_add_u32 v{t}, v{t}, v{u}')
    p(f's_lshl_b32 s{sT0}, s{sW}, 6')
    p(f'v_lshlrev_b32 v{u}, 8, v{t}')
    p(f'v_lshl_add_u32 v{u}, v{c}, 3, v{u}')
    p(f'v_add_u32 v{tTr}, s{sT0}, v{u}')
    p(f'v_add_u32 v{tTr2}, 0x10000, v{tTr}')
    p(f's_lshl_b32 s{sT0}, s{sW}, 8')
    p(f'v_lshlrev_b32 v{u}, 10, v{t}')
    p(f'v_lshl_add_u32 v{u}, v{c}, 3, v{u}')
    p(f'v_add_u32 v{tTrO}, s{sT0}, v{u}')
    p(f'v_add_u32 v{tTrO2}, 0x10000, v{tTrO}')
    for k in range(4): p(f'v_mov_b32 v{ONES+k}, 0x3f803f80')
    for k in range(4): p(f'v_mov_b32 v{PZ+k}, 0')
    p(f'v_mov_b32 v{t}, 0x3f80')
    p(f'v_mov_b32 v{u}, 0x3f800000')
    for k in range(4):
        p(f'v_mov_b32 v{SEL+k}, 0')
        p(f'v_cmp_eq_u32 vcc, {2*k}, v{t7}')
        p(f'v_cndmask_b32 v{SEL+k}, v{SEL+k}, v{t}, vcc')
        p(f'v_cmp_eq_u32 vcc, {2*k+1}, v{t7}')
        p(f'v_cndmask_b32 v{SEL+k}, v{SEL+k}, v{u}, vcc')

def issue_chunk(p, c):
    slot = c % 8
    p(f's_lshl_b32 s{sT0}, s{sW}, 12')
    p(f's_add_u32 s{sT0}, s{sT0}, {slot*16384}')
    p(f's_mov_b32 m0, s{sT0}')
    if c < 24:
        mi, i = c // 8, c % 8
        Sd = [S_WQ, S_WK, S_WV][mi]
        p(f's_lshl_b32 s{sT1}, s{sW}, 17')
        p(f's_add_u32 s{sT1}, s{sT1}, s{sH8}')
        p(f's_add_u32 s{sT1}, s{sT1}, {64*i*8192}')
        for zz in range(4):
            p(f'buffer_load_dwordx4 v{tWsrc}, {srd(Sd)}, s{sT1} offen offset:{zz*1024} lds')
            if zz < 3: p(f's_add_u32 s{sT1}, s{sT1}, {4*8192-1024}')
    else:
        b = c - 24
        p(f's_lshl_b32 s{sT1}, s{sH}, 17')
        p(f's_lshl_b32 s{sT2}, s{sW}, 12')
        p(f's_add_u32 s{sT1}, s{sT1}, s{sT2}')
        p(f's_add_u32 s{sT1}, s{sT1}, {b*16384}')
        for zz in range(4):
            p(f'buffer_load_dwordx4 v{vL16}, {srd(S_WO)}, s{sT1} offen offset:{zz*1024} lds')

def load_weights(p):
    for c in range(24):
        issued = min(c + 6, 31)
        p(f's_waitcnt vmcnt({(issued - c) * 4})')
        p('s_barrier')
        if c == 8: dbg_add(p, D_TEAM, 40, 41)
        if c == CWAT: dbg_add(p, D_CW, 40, 41, wave=3)
        if c + 7 <= 31: issue_chunk(p, c + 7)
        mi, i = c // 8, c % 8
        slot = c % 8
        base = tTr if slot < 4 else tTr2
        for t in range(2):
            for u in range(4):
                imm = (slot % 4) * 16384 + ((u >> 1) * 32 + (u & 1) * 2) * 256 + 32 * t
                r0 = (t * 8 + i) * 8 + 2 * u
                dst = [a_(r0, 2), a_(128 + r0, 2), v(128 + r0, 2)][mi]
                p(f'ds_read_b64_tr_b16 {dst}, v{base} offset:{imm}')
        p('s_waitcnt lgkmcnt(0)')
    p('s_barrier')
    issue_chunk(p, 31)
    if CWAT == 24: dbg_add(p, D_CW, 40, 41, wave=3)
    p('s_waitcnt vmcnt(0)')
    p('s_barrier')
    buf = [28, 36, 44, 52, 84, 92, 100]
    for ks in range(2):
        base = tTrO + ks
        for i in range(8):
            for u in range(4):
                imm = ((u >> 1) * 32 + (u & 1) * 2) * 1024 + 32 * i
                dst = WOR + ks * 8 + 2 * u if i == 0 else buf[i - 1] + 2 * u
                p(f'ds_read_b64_tr_b16 {v(dst,2)}, v{base} offset:{imm}')
            if i % 2 == 1: p('s_waitcnt lgkmcnt(0)')
        p('s_barrier')
        for i in range(1, 8):
            for hf in range(2):
                p(f'ds_write_b128 v{vWo0 + ks}, {v(buf[i-1] + 4*hf, 4)} offset:{(i-1)*2048 + hf*1024}')
        p('s_waitcnt lgkmcnt(0)')
        p('s_barrier')

def kv_dma(s_seg_reg, quarters):
    L = []
    L.append(f's_lshl_b32 s{sT1}, s{s_seg_reg}, 19')
    L.append(f's_lshl_b32 s{sT0}, s{sH}, 14')
    L.append(f's_add_u32 s{sT1}, s{sT1}, s{sT0}')
    L.append(f's_and_b32 s{sT0}, s{s_seg_reg}, 1')
    L.append(f's_lshl_b32 s{sT0}, s{sT0}, 14')
    L.append(f's_add_u32 s{sT0}, s{sT0}, {L_KVB + quarters[0]*4096}')
    L.append(f's_add_u32 s{sT1}, s{sT1}, {WS_KVF + quarters[0]*4096}')
    for k, q in enumerate(quarters):
        L.append(f's_mov_b32 m0, s{sT0}')
        L.append('s_nop 0')
        for zz in range(4):
            L.append(f'buffer_load_dwordx4 v{vL16}, {srd(S_WS)}, s{sT1} offen offset:{zz*1024} sc1 lds')
        if k + 1 < len(quarters):
            L.append(f's_add_u32 s{sT0}, s{sT0}, 4096')
            L.append(f's_add_u32 s{sT1}, s{sT1}, 4096')
    return L

def post(acc, out):
    return [f'v_add_f32 v{acc}, v{acc}, v{acc+1}', f'v_add_f32 v{acc+2}, v{acc+2}, v{acc+3}', f'v_cvt_pk_bf16_f32 v{out}, v{acc}, v{acc+2}']

def weave(p, mf, *streams):
    st = [[a, b, list(c)] for a, b, c in streams]
    for k, m in enumerate(mf):
        p(m)
        for s_ in st:
            if k >= s_[0]:
                for _ in range(s_[1]):
                    if s_[2]: p(s_[2].pop(0))
    for s_ in st:
        for x in s_[2]: p(x)

def stamp(p, k, on):
    if on: p(f's_memtime s[{sTS+2*k}:{sTS+2*k+1}]')

def chk(p, R):
    p(f'v_max3_u32 v{vT0}, v{R}, v{R+1}, v{R+2}')
    p(f'v_max_u32 v{vT0}, v{vT0}, v{R+3}')
    p(f'v_cmp_eq_u32 vcc, -1, v{vT0}')


def kv_ready(p):
    u = uid()
    p(f's_cmp_gt_u32 s{sRdy}, s{sT3}')
    p(f's_cbranch_scc1 L_kr{u}')
    p(f'v_lshrrev_b32 v{vT1}, 2, v{vL16}')
    p.label(f'L_krl{u}')
    p(f'buffer_load_dword v{vT0}, v{vT1}, {srd(S_WS)}, s{sFk} offen sc1')
    spin(p)
    p('s_waitcnt vmcnt(0)')
    p(f'v_cmp_eq_u32 vcc, 0, v{vT0}')
    p(f's_ff1_i32_b64 s{sRdy}, vcc')
    p(f's_min_u32 s{sRdy}, s{sRdy}, 64')
    p(f's_cmp_gt_u32 s{sRdy}, s{sT3}')
    p(f's_cbranch_scc0 L_krl{u}')
    p.label(f'L_kr{u}')

def step_body(p, w, st, prof):
    tag = f'w{w}{"s" if st else "f"}'
    QA, QB = 2 * w, 2 * w + 1
    def mload(Q): return f'buffer_load_dwordx4 {v(MFq(Q),4)}, v{vL16}, {srd(S_WS)}, s{sMld} offen offset:{(Q&1)*1024} sc1'
    def mwr(Q): return f'ds_write_b128 v{vHi}, {v(MFq(Q),4)} offset:{L_MX - L_KVB + Q*1024}'
    def mrd(Q): return f'ds_read_b128 {v(MFq(Q),4)}, v{vHi} offset:{L_MX - L_KVB + Q*1024}'
    p.label(f'L_step_{tag}')
    stamp(p, 0, prof)
    if prof: p(f's_memrealtime s[90:91]')
    PA2 = QOP
    order = [QA] + [q for q in (0, 2, 4, 6) if q != QA]
    orderB = [QB] + [q for q in (1, 3, 5, 7) if q != QB]
    bb = []
    for Q in order:
        bb += [S(Q0, MFq(Q), Wq(0, Q)), S(Q1, MFq(Q), Wq(1, Q)), S(K0, MFq(Q), Wk(0, Q)), S(K1, MFq(Q), Wk(1, Q)), S(V0, MFq(Q), Wv(0, Q)), S(V1, MFq(Q), Wv(1, Q))]
    for (a0, a1, W) in ((Q0, Q1, Wq), (K0, K1, Wk), (V0, V1, Wv)):
        for Q in orderB: bb += [S(a0, MFq(Q), W(0, Q)), S(a1, MFq(Q), W(1, Q))]
    KF0 = [MFA + 4 * k for k in range(4)]
    KF1 = [X0, X0 + 4, X0 + 8, Q1]
    KOP = [MFq(q) for q in orderB]
    S0, S1, S2 = K0, K1, Q0
    bb += [M32(S0, KF0[k], QOP + 4 * k, '0' if k == 0 else S0) for k in range(4)]
    bb += [M32(S1, KF1[k], QOP + 4 * k, '0' if k == 0 else S1) for k in range(4)]
    bb += [M32(S2, KOP[k], QOP + 4 * k, '0' if k == 0 else S2) for k in range(4)]
    F = {k: [] for k in range(-1, len(bb))}
    def put(k, L, per=1):
        L = list(L)
        while L:
            F[k] += L[:per]; L = L[per:]; k += 1
    mloadB2 = f'buffer_load_dwordx4 {v(PA2,4)}, v{vL16}, {srd(S_WS)}, s{sMld} offen offset:1024 sc1'
    F[5] += ['s_waitcnt lgkmcnt(0)']
    F[6] += [f's_cmp_lg_u32 s{sB}, 0', f's_cbranch_scc1 L_nob2_{tag}', mloadB2, f'L_nob2_{tag}:']
    F[BCHK] += [f's_cmp_lg_u32 s{sB}, 0', f's_cbranch_scc1 L_bok0_{tag}', 's_waitcnt vmcnt(1)',
              f'v_max3_u32 v{vT0}, v{MFq(QB)}, v{MFq(QB)+1}, v{MFq(QB)+2}', f'v_max_u32 v{vT0}, v{vT0}, v{MFq(QB)+3}', f'v_cmp_eq_u32 vcc, -1, v{vT0}',
              f's_cbranch_vccnz L_bok0_{tag}', mwr(QB), f's_mov_b32 s{sB}, 1', f'L_bok0_{tag}:']
    F[19] += [f's_cmp_lg_u32 s{sB}, 0', f's_cbranch_scc1 L_bok1_{tag}', f'L_bloop_{tag}:', 's_waitcnt vmcnt(0)',
              f'v_max3_u32 v{vT0}, v{PA2}, v{PA2+1}, v{PA2+2}', f'v_max_u32 v{vT0}, v{vT0}, v{PA2+3}', f'v_cmp_eq_u32 vcc, -1, v{vT0}',
              f's_cbranch_vccz L_bgot_{tag}', mloadB2, f's_add_u32 s{sSpin}, s{sSpin}, 1', f's_cmp_gt_u32 s{sSpin}, {SPIN_MAX}', 's_cbranch_scc1 L_end',
              f's_branch L_bloop_{tag}', f'L_bgot_{tag}:',
              f'ds_write_b128 v{vHi}, {v(PA2,4)} offset:{L_MX - L_KVB + QB*1024}',
              f'v_mov_b64 {v(MFq(QB),2)}, {v(PA2,2)}', f'v_mov_b64 {v(MFq(QB)+2,2)}, {v(PA2+2,2)}', f'L_bok1_{tag}:',
              f's_cmp_eq_u32 s{sS}, 0', f's_cbranch_scc1 L_haveB_{tag}', 's_waitcnt vmcnt(0) lgkmcnt(0)', 's_barrier'] + \
             [mrd(Q) for Q in orderB[1:]] + [f'L_haveB_{tag}:']
    if prof: F[19].append(f's_memtime s[{sTS+2}:{sTS+3}]')
    sc = [f's_and_b32 s{sT3}, s{sS}, 1', f's_lshl_b32 s{sT3}, s{sT3}, 14', f'v_add_u32 v{vKV}, s{sT3}, v{vHi}',
          f's_add_u32 s{sT2}, s{sS}, 1', f's_cmp_eq_u32 s{sS}, 63', f's_cselect_b32 s{sT2}, 62, s{sT2}']
    dma = kv_dma(sT2, (w,))
    ex = [f's_lshl_b32 s{sExp}, s{sS}, 5', f's_add_u32 s{sExp}, s{sExp}, s{sH}', f's_lshl_b32 s{sT3}, s{sExp}, 11',
          f's_add_u32 s{sT3}, s{sT3}, {WS_VM + w*512}', f's_lshl_b32 s{sT4}, s{sExp}, 12', f's_add_u32 s{sT4}, s{sT4}, {WS_KM + w*1024}']
    put(7, sc, 1)
    put(14, dma[:8], 2)
    put(20, ex, 2)
    if w == 3:
        F[23] += [f'buffer_store_dword v{ONES}, off, {srd(S_WS)}, s{sFm} sc1', f's_add_u32 s{sFm}, s{sFm}, 4']
    F[25] += ['s_waitcnt lgkmcnt(0)']
    kf0 = [f'ds_read_b128 {v(KF0[k],4)}, v{vKV} offset:{k*1024}' for k in range(4)]
    kf1 = [f'ds_read_b128 {v(KF1[k],4)}, v{vKV} offset:{4096+k*1024}' for k in range(4)]
    put(26, kf0 + kf1[:3], 1)
    NEG = QOP + 4
    rs = [f'buffer_store_dwordx4 {v(NEG,4)}, v{vL16}, {srd(S_WS)}, s{sPld} offen offset:{c*1024} {st}' for c in range(2)]
    F[24 + w].append(rs[0]); F[28 + w].append(rs[1])
    if w == 2: F[23].append(f'buffer_store_dwordx2 {v(NEG,2)}, v{vMst}, {srd(S_WS)}, s{sMrs} offen {st}')
    F[32 + w].append(dma[9]); F[36 + w].append(dma[10]); F[48 + w].append(dma[11]); F[52 + w].append(dma[12])
    qpost = post(Q0, vT0) + post(Q1, vT1) + [f'ds_write2_b32 v{vQw}, v{vT0}, v{vT1} offset0:0 offset1:64']
    put(33, qpost, 1)
    F[40].append(kf1[3])
    kpost = post(K0, vT0) + post(K1, vT1) + [f'ds_write2_b32 v{vKw}, v{vT0}, v{vT1} offset0:0 offset1:128']
    F[40] += kpost[:3]
    F[41] += kpost[3:]
    F[KBAR] += ['s_waitcnt lgkmcnt(0)', 's_barrier']
    if prof: F[KBAR].append(f's_memtime s[{sTS+4}:{sTS+5}]')
    rd = [f'ds_read_b64_tr_b16 {v(QOP+4*ks+2*hf,2)}, v{vQr} offset:{ks*512+hf*64}' for ks in range(4) for hf in range(2)]
    kop = [f'ds_read_b64_tr_b16 {v(KOP[ks]+2*hf,2)}, v{vKr} offset:{ks*1024+hf*128}' for ks in range(4) for hf in range(2)]
    F[KBAR] += rd[:4]
    put(KBAR + 1, rd[4:], 2)
    F[45] += kop[:4]; F[46] += kop[4:6]; F[47] += kop[6:8]
    F[47] += ['s_waitcnt lgkmcnt(8)']
    if prof: F[47].append(f's_memtime s[{sTS+6}:{sTS+7}]')
    VMO = V1 + 2
    vpost = post(V0, V0 + 1) + [f'v_add_f32 v{V1}, v{V1}, v{V1+1}', f'v_add_f32 v{V1+2}, v{V1+2}, v{V1+3}',
                                f'v_cvt_pk_bf16_f32 v{V1+3}, v{V1}, v{V1+2}', f'v_mov_b32 v{V1+2}, v{V0+1}', f'v_lshrrev_b32 v{vT1}, 1, v{vL16}']
    put(49, vpost, 2)
    VF = MFA
    vf = [f'ds_read_b128 {v(VF+4*d,4)}, v{vKV} offset:{8192+(2*w+d)*1024}' for d in range(2)]
    def wo_rd(i, ks, dst):
        return [f'ds_read_b128 {v(dst+4*hf,4)}, v{vWo0+ks} offset:{(i-1)*2048+hf*1024}' for hf in range(2)]
    WB = {(0, 0): WOR, (0, 1): WOR + 8, (1, 0): MFA + 8, (1, 1): X0, (2, 0): MFB, (2, 1): MFB + 8}
    put(52, vf + wo_rd(1, 0, MFA + 8), 1)
    F[55] += ['s_waitcnt lgkmcnt(4)']
    F[56 + (w & 1)].append(f'buffer_store_dwordx2 {v(VMO,2)}, v{vT1}, {srd(S_WS)}, s{sT3} offen sc1')
    F[58 + (w & 1)].append(f'buffer_store_dwordx4 {v(KOP[w],4)}, v{vL16}, {srd(S_WS)}, s{sT4} offen sc1')
    put(56, wo_rd(1, 1, X0), 1)
    m = vT0
    mx = [f'v_max3_f32 v{m}, v{S0}, v{S0+1}, v{S0+2}', f'v_max3_f32 v{m}, v{m}, v{S0+3}, v{S1}',
          f'v_max3_f32 v{m}, v{m}, v{S1+1}, v{S1+2}', f'v_max_f32 v{m}, v{m}, v{S1+3}']
    put(58, mx, 2)
    for k, x in enumerate(bb):
        p(x)
        for y in F[k]:
            if 'vmem' in SKIP and y.startswith('buffer_') and 'sc1' in y and 'lds' in y: continue
            if 'rs' in SKIP and y.startswith('buffer_store'): continue
            p(y)
    stamp(p, 4, prof)
    p(f's_cmp_eq_u32 s{sS}, {LAST}')
    p(f's_cbranch_scc1 L_chain_fin')
    for x in wo_rd(2, 0, MFB) + wo_rd(2, 1, MFB + 8): p(x)
    p(f'v_max3_f32 v{m}, v{m}, v{S2}, v{S2+1}')
    p(f'v_mov_b32 v{vT1}, v{m}')
    p(f'v_permlane16_swap_b32 v{m}, v{vT1}')
    p(f'v_max_f32 v{m}, v{m}, v{vT1}')
    p(f'v_mov_b32 v{vT1}, v{m}')
    p(f'v_permlane32_swap_b32 v{m}, v{vT1}')
    p(f'v_max_f32 v{m}, v{m}, v{vT1}')
    mc = S2 + 2
    p(f'v_mul_f32 v{mc}, s{sC}, v{m}')
    for R in (S0, S0 + 2, S1, S1 + 2, S2):
        p(f'v_pk_fma_f32 {v(R,2)}, {v(R,2)}, s[{sC}:{sC+1}], {v(mc,2)} op_sel_hi:[1,1,0] neg_lo:[0,0,1] neg_hi:[0,0,1]')
    P01 = V0
    OA0, OA1, LA = QOP, QOP + 4, QOP + 8
    for R in (S0, S0 + 1): p(f'v_exp_f32 v{R}, v{R}')
    for R in (S0 + 2, S0 + 3): p(f'v_exp_f32 v{R}, v{R}')
    p(f'v_cvt_pk_bf16_f32 v{P01}, v{S0}, v{S0+1}')
    for R in (S1, S1 + 1): p(f'v_exp_f32 v{R}, v{R}')
    p(f'v_cvt_pk_bf16_f32 v{P01+1}, v{S0+2}, v{S0+3}')
    for R in (S1 + 2, S1 + 3): p(f'v_exp_f32 v{R}, v{R}')
    p(f'v_cvt_pk_bf16_f32 v{P01+2}, v{S1}, v{S1+1}')
    for R in (S2, S2 + 1): p(f'v_exp_f32 v{R}, v{R}')
    p(f'v_cvt_pk_bf16_f32 v{P01+3}, v{S1+2}, v{S1+3}')
    p(f'v_cvt_pk_bf16_f32 v{PZ}, v{S2}, v{S2+1}')
    p(f'v_cvt_pk_bf16_f32 v{PZ+3}, v{S2}, v{S2+1}')
    p('s_waitcnt lgkmcnt(8)')
    p(M32(LA, ONES, P01, '0'))
    p(M32(OA0, VF, P01, '0'))
    p(M32(OA1, VF + 4, P01, '0'))
    p(M16(LA, ONES, PZ, LA))
    p(M16(OA0, VMO, PZ, OA0))
    p(M16(OA1, VMO, PZ + 2, OA1))
    WB[(3, 0)] = Q0
    for x in wo_rd(3, 0, Q0): p(x)
    p(f's_and_b32 s{sPst}, s{sS}, 1')
    p(f's_lshl_b32 s{sPst}, s{sPst}, 18')
    p(f'v_rcp_f32 v{vT0}, v{LA}')
    p(f's_add_u32 s{sPld}, s{sPst}, {WS_PRING}')
    p(f's_add_u32 s{sPst}, s{sPst}, s{sH8}')
    p(f's_add_u32 s{sPst}, s{sPst}, {WS_PRING + 2*w*32768}')
    for R in (OA0, OA0 + 2):
        p(f'v_pk_mul_f32 {v(R,2)}, {v(R,2)}, {v(vT0,2)} op_sel_hi:[1,0]')
    p(f'v_cvt_pk_bf16_f32 v{OA0}, v{OA0}, v{OA0+1}')
    p(f'v_cvt_pk_bf16_f32 v{OA0+1}, v{OA0+2}, v{OA0+3}')
    p(f'ds_write_b64 v{vOw}, {v(OA0,2)}')
    for R in (OA1, OA1 + 2):
        p(f'v_pk_mul_f32 {v(R,2)}, {v(R,2)}, {v(vT0,2)} op_sel_hi:[1,0]')
    p(f'v_cvt_pk_bf16_f32 v{OA1}, v{OA1}, v{OA1+1}')
    p(f'v_cvt_pk_bf16_f32 v{OA1+1}, v{OA1+2}, v{OA1+3}')
    p(f'ds_write_b64 v{vOw}, {v(OA1,2)} offset:32')
    ACC = [K0, K1, V0, V1, X0 + 8, QOP + 8, QOP + 12, QOP + 4]
    for t in range(4):
        p(f'v_mov_b64 {v(ACC[t],2)}, 0'); p(f'v_mov_b64 {v(ACC[t]+2,2)}, 0')
    p('s_waitcnt vmcnt(6) lgkmcnt(0)')
    p('s_barrier')
    stamp(p, 5, prof)
    OA = VF
    p(f'ds_read_b128 {v(OA,4)}, v{vOr}')
    p(f'ds_read_b128 {v(OA+4,4)}, v{vOr} offset:128')
    for t in range(4, 8):
        p(f'v_mov_b64 {v(ACC[t],2)}, 0'); p(f'v_mov_b64 {v(ACC[t]+2,2)}, 0')
    p(f's_add_u32 s{sT0}, s{sS}, 1')
    p(f's_and_b32 s{sT0}, s{sT0}, 3')
    p(f's_lshl_b32 s{sT0}, s{sT0}, 13')
    p(f's_add_u32 s{sMld}, s{sT0}, {WS_MRING + 2*w*1024}')
    if w == 2:
        p(f's_add_u32 s{sMstO}, s{sT0}, s{sPiece}')
        p(f's_and_b32 s{sMrs}, s{sS}, 3')
        p(f's_lshl_b32 s{sMrs}, s{sMrs}, 13')
        p(f's_add_u32 s{sMrs}, s{sMrs}, s{sPiece}')
    p(f's_lshl_b32 s{sT0}, s{sH}, 13')
    p(f's_add_u32 s{sPld}, s{sPld}, s{sT0}')
    if w == 2: p(f's_add_u32 s{sPld2}, s{sPld}, 4096')
    p('s_waitcnt lgkmcnt(0)')
    def wo(i): return [S(ACC[i], OA, v(WB[(i, 0)], 8)), S(ACC[i], OA + 4, v(WB[(i, 1)], 8))]
    OUT0, OUT1 = QOP, K0
    for x in wo(0): p(x)
    p(wo(1)[0])
    WB[(3, 1)] = MFA + 8
    for x in wo_rd(3, 1, MFA + 8): p(x)
    p(wo(1)[1])
    WB[(4, 0)] = X0
    for x in wo_rd(4, 0, X0): p(x)
    p(post(ACC[0], OUT0)[0])
    p(wo(2)[0])
    WB[(4, 1)] = MFB
    for x in wo_rd(4, 1, MFB): p(x)
    p(post(ACC[0], OUT0)[1])
    p(wo(2)[1])
    WB[(5, 0)] = MFB + 8
    for x in wo_rd(5, 0, MFB + 8): p(x)
    p(post(ACC[0], OUT0)[2])
    p(wo(3)[0])
    WB[(5, 1)] = Q0
    for x in wo_rd(5, 1, Q0): p(x)
    p(post(ACC[1], OUT0 + 1)[0])
    p('s_waitcnt lgkmcnt(8)')
    p(wo(3)[1])
    WB[(6, 0)] = MFA + 8
    for x in post(ACC[1], OUT0 + 1)[1:]: p(x)
    for x in post(ACC[2], OUT0 + 2): p(x)
    p('s_waitcnt lgkmcnt(6)')
    p(wo(4)[0])
    WB[(6, 1)] = X0
    for x in post(ACC[3], OUT0 + 3): p(x)
    p(f'buffer_store_dwordx4 {v(OUT0,4)}, v{vPst}, {srd(S_WS)}, s{sPst} offen {st}')
    for x in wo_rd(6, 0, MFA + 8) + wo_rd(6, 1, X0): p(x)
    p('s_waitcnt lgkmcnt(8)')
    p(wo(4)[1])
    WB[(7, 0)] = MFB
    for x in wo_rd(7, 0, MFB): p(x)
    p('s_waitcnt lgkmcnt(8)')
    p(wo(5)[0])
    WB[(7, 1)] = MFB + 8
    for x in wo_rd(7, 1, MFB + 8): p(x)
    p(f's_add_u32 s{sPst}, s{sPst}, 32768')
    p('s_waitcnt lgkmcnt(8)')
    p(wo(5)[1])
    for x in post(ACC[4], OUT1)[:2]: p(x)
    p('s_waitcnt lgkmcnt(4)')
    p(wo(6)[0]); p(post(ACC[4], OUT1)[2])
    p(wo(6)[1])
    for x in post(ACC[5], OUT1 + 1)[:2]: p(x)
    p('s_waitcnt lgkmcnt(0)')
    p(wo(7)[0]); p(post(ACC[5], OUT1 + 1)[2])
    p(wo(7)[1])
    RB = [MF, 60]
    def pld(k): return [f'buffer_load_dwordx4 {v(RB[k]+4*u,4)}, v{vL16}, {srd(S_WS)}, s{sPld if u < 4 else sPld2} offen offset:{(u%4)*1024} sc1' for u in range(8)]
    for x in post(ACC[6], OUT1 + 2): p(x)
    for x in post(ACC[7], OUT1 + 3): p(x)
    p(f'buffer_store_dwordx4 {v(OUT1,4)}, v{vPst}, {srd(S_WS)}, s{sPst} offen {st}')
    stamp(p, 6, prof)
    if w == 2:
        D = X0
        def red(k, young):
            for u in range(8):
                p(f's_waitcnt vmcnt({7-u+young})')
                p(M32(D, RB[k] + 4 * u, SEL, '0' if u == 0 else D))
            p(f'v_cmp_u_f32 vcc, v{D}, v{D+1}')
            p(f'v_cmp_u_f32 s[{sPP}:{sPP+1}], v{D+2}, v{D+3}')
            p(f'v_cvt_pk_bf16_f32 v{D+4}, v{D}, v{D+1}')
            p(f'v_cvt_pk_bf16_f32 v{D+5}, v{D+2}, v{D+3}')
            p(f's_or_b64 vcc, vcc, s[{sPP}:{sPP+1}]')
            p(f's_cbranch_vccz L_prok_{tag}')
        p(f's_mov_b32 s{sT4}, 0')
        p(f's_bitcmp1_b32 s{sH}, 2')
        p(f's_cbranch_scc0 L_prE_{tag}')
        p(f's_sleep {ODD_SLEEP - EV_SLEEP}')
        p.label(f'L_prE_{tag}')
        if EV_SLEEP: p(f's_sleep {EV_SLEEP}')
        for x in pld(0): p(x)
        red(0, 0)
        for x in pld(0): p(x)
        p('s_sleep 2')
        for x in pld(1): p(x)
        p.label(f'L_pr0_{tag}')
        red(0, 8)
        p.label(f'L_pr1_{tag}')
        for x in pld(0): p(x)
        red(1, 8)
        for x in pld(1): p(x)
        spin(p)
        p(f's_add_u32 s{sT4}, s{sT4}, 1')
        p(f's_and_b32 s{sT0}, s{sT4}, 63')
        p(f's_cmp_lg_u32 s{sT0}, 0')
        p(f's_cbranch_scc1 L_pr0_{tag}')
        p('s_waitcnt vmcnt(8)')
        p(f'v_max3_u32 v{vT0}, v{RB[0]}, v{RB[0]+1}, v{RB[0]+2}')
        for k in range(3, 31, 2):
            p(f'v_max3_u32 v{vT0}, v{vT0}, v{RB[0]+k}, v{RB[0]+k+1}')
        p(f'v_max_u32 v{vT0}, v{vT0}, v{RB[0]+31}')
        p(f'v_cmp_eq_u32 vcc, -1, v{vT0}')
        p(f's_cbranch_vccnz L_pr0_{tag}')
        for u in range(8): p(M32(D, RB[0] + 4 * u, SEL, '0' if u == 0 else D))
        p(f'v_cvt_pk_bf16_f32 v{D+4}, v{D}, v{D+1}')
        p(f'v_cvt_pk_bf16_f32 v{D+5}, v{D+2}, v{D+3}')
        p.label(f'L_prok_{tag}')
        p(f's_mov_b64 exec, s[{sM8}:{sM8+1}]')
        p(f'buffer_store_dwordx2 {v(D+4,2)}, v{vMst}, {srd(S_WS)}, s{sMstO} offen {st}')
        p(f's_mov_b64 exec, -1')
        stamp(p, 7, prof)
        p('s_waitcnt vmcnt(1)')
    if w == 0:
        p(f's_add_u32 s{sT3}, s{sS}, 2')
        p(f's_min_u32 s{sT3}, s{sT3}, 63')
        kv_ready(p)
    p('s_barrier')
    p(f's_mov_b32 s{sB}, 0')
    if w: p(f's_add_u32 s{sPld}, s{sPld}, {w*2048}')
    def mload2(): return f'buffer_load_dwordx4 {v(PA2,4)}, v{vL16}, {srd(S_WS)}, s{sMld} offen sc1'
    p(mload(QA))
    for t in (Q0, Q1, K0, K1, V0, V1):
        p(f'v_mov_b64 {v(t,2)}, 0'); p(f'v_mov_b64 {v(t+2,2)}, 0')
    p(f'v_mov_b64 {v(QOP+4,2)}, {SENT}'); p(f'v_mov_b64 {v(QOP+6,2)}, {SENT}')
    p.label(f'L_pa_{tag}')
    p(mload2())
    p('s_waitcnt vmcnt(1)')
    chk(p, MFq(QA))
    p(f's_cbranch_vccz L_paok_{tag}')
    p(mload(QA))
    spin(p)
    p('s_waitcnt vmcnt(1)')
    chk(p, PA2)
    p(f's_cbranch_vccnz L_pa_{tag}')
    p(f'ds_write_b128 v{vHi}, {v(PA2,4)} offset:{L_MX - L_KVB + QA*1024}')
    p(f'v_mov_b64 {v(MFq(QA),2)}, {v(PA2,2)}')
    p(f'v_mov_b64 {v(MFq(QA)+2,2)}, {v(PA2+2,2)}')
    p(f's_branch L_paok2_{tag}')
    p.label(f'L_paok_{tag}')
    p(mwr(QA))
    p.label(f'L_paok2_{tag}')
    p(mload(QB))
    if w != 2: stamp(p, 7, prof)
    if prof:
        p(f's_cmp_eq_u32 s{sS}, 40')
        p(f's_cbranch_scc0 L_nodump_{tag}')
        p(f's_memtime s[{sTS+16}:{sTS+17}]')
        p('s_waitcnt lgkmcnt(0)')
        p(f's_add_u32 s{sT0}, s{sH8}, s{sPB}')
        for k in range(9):
            p(f'v_mov_b32 v{vT0}, s{sTS+2*k}')
            p(f'buffer_store_dword v{vT0}, off, {srd(S_WS)}, s{sT0} offset:{(w*16+k)*4}')
        p(f'v_mov_b32 v{vT0}, s{sSpin}')
        p(f'buffer_store_dword v{vT0}, off, {srd(S_WS)}, s{sT0} offset:{(w*16+9)*4}')
        p(f'v_mov_b32 v{vT0}, s90')
        p(f'buffer_store_dword v{vT0}, off, {srd(S_WS)}, s{sT0} offset:{(w*16+10)*4}')
        p.label(f'L_nodump_{tag}')
    p(f's_add_u32 s{sS}, s{sS}, 1')
    p('s_waitcnt lgkmcnt(0)')
    p('s_barrier')
    for Q in (0, 2, 4, 6):
        if Q != QA: p(mrd(Q))
    p(f's_branch L_step_{tag}')


def chain_pre(p):
    build_srd(p, S_WQ, 16, 4 * MB)
    build_srd(p, S_WK, 24, 4 * MB)
    build_srd(p, S_WV, 32, 4 * MB)
    build_srd(p, S_WO, 40, 4 * MB)
    build_srd(p, S_M0, 8, 8192)
    p(f's_mov_b32 s{sM8}, 0x00ff00ff')
    p(f's_mov_b32 s{sM8+1}, 0x00ff00ff')
    cval = f32(math.log2(math.e) / math.sqrt(128.0))
    p(f's_mov_b32 s{sC}, {cval:#x}')
    p(f's_mov_b32 s{sC+1}, {cval:#x}')
    p(f's_mov_b32 s{sPB}, {WS_PROF}')
    p(f's_lshl_b32 s{sH8}, s{sH}, 8')
    p(f's_add_u32 s{sFk}, s{sH8}, {WS_FKV}')
    p(f's_lshl_b32 s{sFm}, s{sH}, 9')
    p(f's_add_u32 s{sFm}, s{sFm}, {WS_FMEM}')
    p(f's_mov_b32 s{sRdy}, 0')
    p(f's_lshr_b32 s{sT0}, s{sH}, 2')
    p(f's_lshl_b32 s{sT0}, s{sT0}, 10')
    p(f's_and_b32 s{sT1}, s{sH}, 3')
    p(f's_lshl_b32 s{sT1}, s{sT1}, 6')
    p(f's_add_u32 s{sPiece}, s{sT0}, s{sT1}')
    p(f's_add_u32 s{sPiece}, s{sPiece}, {WS_MRING}')
    lane_consts(p)
    p('s_waitcnt lgkmcnt(0)')
    for c in range(7): issue_chunk(p, c)

def chain_role(p, prof=False, light=False):
    for r in range(4): p(f'v_mov_b32 v{40+r}, -1')
    p(f's_lshl_b32 s{sT0}, s{sH}, 13')
    p(f's_lshl_b32 s{sT1}, s{sW}, 11')
    p(f's_add_u32 s{sT0}, s{sT0}, s{sT1}')
    p(f's_add_u32 s{sT0}, s{sT0}, {WS_PRING}')
    p(f's_add_u32 s{sT1}, s{sT0}, 262144')
    p(f's_lshl_b32 s{sT2}, s{sW}, 13')
    p(f's_add_u32 s{sT2}, s{sT2}, s{sPiece}')
    p(f's_cmp_lg_u32 s{sMode}, 0')
    p('s_cbranch_scc1 L_ci_s')
    for st in ('', 'sc1'):
        if st: p.label('L_ci_s')
        for c in range(2):
            p(f'buffer_store_dwordx4 v[40:43], v{vL16}, {srd(S_WS)}, s{sT0} offen offset:{c*1024} {st}')
            p(f'buffer_store_dwordx4 v[40:43], v{vL16}, {srd(S_WS)}, s{sT1} offen offset:{c*1024} {st}')
        p(f'buffer_store_dwordx2 v[40:41], v{vMst}, {srd(S_WS)}, s{sT2} offen {st}')
        if not st: p('s_branch L_ci_d')
    p.label('L_ci_d')
    load_weights(p)
    tl(p, 2, 40)
    p(f'v_lshlrev_b32 v{vT1}, 4, v0')
    p(f'v_add_u32 v{vT1}, {L_KX}, v{vT1}')
    p(f'ds_write_b128 v{vT1}, {v(PZ,4)}')
    p(f'v_mov_b32 v{QOP}, v{tM0}')
    for Q in range(8):
        p(f'buffer_load_dwordx4 {v(MFq(Q),4)}, v{QOP}, {srd(S_M0)}, 0 offen offset:{Q*128}')
    for t in (Q0, Q1, K0, K1, V0, V1):
        p(f'v_mov_b64 {v(t,2)}, 0'); p(f'v_mov_b64 {v(t+2,2)}, 0')
    wait_ge1(p, S_DBG, '0', D_TEAM * 4, 32, QOP)
    tl(p, 3, QOP)
    p(f's_mov_b32 s{sT3}, 1')
    kv_ready(p)
    tl(p, 4, QOP)
    p(f's_mov_b32 s{sT2}, 0')
    L = kv_dma(sT2, (0,))
    for x in L[:7]: p(x)
    p(f's_lshl_b32 s{sT3}, s{sW}, 12')
    p(f's_add_u32 s{sT0}, s{sT0}, s{sT3}')
    p(f's_add_u32 s{sT1}, s{sT1}, s{sT3}')
    for x in L[7:]: p(x)
    p(f's_mov_b32 s{sS}, 0')
    p(f's_mov_b32 s{sB}, 1')
    p(f's_lshl_b32 s{sT0}, s{sH}, 13')
    p(f's_lshl_b32 s{sT1}, s{sW}, 11')
    p(f's_add_u32 s{sPld}, s{sT0}, s{sT1}')
    p(f's_add_u32 s{sPld}, s{sPld}, {WS_PRING + 262144}')
    p(f's_mov_b32 s{sMrs}, s{sPiece}')
    p(f'v_mov_b64 {v(QOP+4,2)}, -1'); p(f'v_mov_b64 {v(QOP+6,2)}, -1')
    p('s_waitcnt vmcnt(0)')
    p('s_barrier')
    if light:
        p('s_memrealtime s[94:95]')
        p('s_waitcnt lgkmcnt(0)')
    p(f's_lshl_b32 s{sT0}, s{sMode}, 2')
    p(f's_add_u32 s{sT0}, s{sT0}, s{sW}')
    k = 0
    for st in ('', 'sc1'):
        for w in range(4):
            if k:
                p(f's_cmp_eq_u32 s{sT0}, {k}')
                p(f's_cbranch_scc1 L_step_w{w}{"s" if st else "f"}')
            k += 1
    for st in ('', 'sc1'):
        for w in range(4):
            step_body(p, w, st, prof)
    p.label('L_chain_fin')
    tl(p, 5, 60)
    p('s_waitcnt vmcnt(0)')
    p('s_barrier')
    p(f's_cmp_lg_u32 s{sW}, 3')
    p('s_cbranch_scc1 L_end')
    p(f'buffer_store_dword v{ONES}, off, {srd(S_WS)}, s{sFm} sc1')
    if light:
        p('s_memrealtime s[96:97]')
        p('s_waitcnt lgkmcnt(0)')
        p(f's_lshl_b32 s{sT0}, s{sH}, 4')
        p(f's_add_u32 s{sT0}, s{sT0}, {WS_PROF + 16384}')
        p('v_mov_b32 v60, s92')
        p('v_mov_b32 v61, s94')
        p('v_mov_b32 v62, s96')
        p('v_mov_b32 v63, s51')
        p(f'buffer_store_dwordx4 v[60:63], off, {srd(S_WS)}, s{sT0}')
    p('s_branch L_end')
```

```python
from asmlib import *
from layout import *
import math, struct, os
S_WS, S_DBG = 4, 28
sH, sW, sS = 32, 33, 34
sT0, sT1, sT2, sT3, sT4 = 40, 41, 42, 43, 44
sSpin = 51
sTeam, sMode = 58, 59
SPIN_MAX = 300000
def srd(n): return f's[{n}:{n+3}]'
def v(a, n=1): return f'v{a}' if n == 1 else f'v[{a}:{a+n-1}]'
def a_(a, n=1): return f'a{a}' if n == 1 else f'a[{a}:{a+n-1}]'
def R(r, n=1):
    return a_(r - 256, n) if r >= 256 else v(r, n)
def M32(D, A, B, C): return f'v_mfma_f32_16x16x32_bf16 {R(D,4)}, {R(A,4)}, {R(B,4)}, {C if C=="0" else R(C,4)}'
def M16(D, A, B, C): return f'v_mfma_f32_16x16x16_bf16 {R(D,4)}, {R(A,2)}, {R(B,2)}, {C if C=="0" else R(C,4)}'
def f32(x): return struct.unpack('<I', struct.pack('<f', x))[0]
def build_srd(p, n, ka_off, size):
    p(f's_load_dwordx2 s[{n}:{n+1}], s[0:1], {ka_off}')
    p(f's_mov_b32 s{n+2}, {size}')
    p(f's_mov_b32 s{n+3}, 0x20000')
def spin(p):
    p(f's_add_u32 s{sSpin}, s{sSpin}, 1')
    p(f's_cmp_gt_u32 s{sSpin}, {SPIN_MAX}')
    p(f's_cbranch_scc1 L_end')
_uid = [0]
def uid():
    _uid[0] += 1
    return _uid[0]
def wait_ge(p, S, soff, imm, val, vt, sleep=2):
    u = uid()
    p.label(f'L_wg{u}')
    p(f'buffer_load_dword v{vt}, off, {srd(S)}, {soff} offset:{imm} sc1')
    spin(p)
    p('s_waitcnt vmcnt(0)')
    p(f'v_readfirstlane_b32 s{sT0}, v{vt}')
    p(f's_cmp_ge_u32 s{sT0}, {val}')
    p(f's_cbranch_scc1 L_wd{u}')
    p(f's_sleep {sleep}')
    p(f's_branch L_wg{u}')
    p.label(f'L_wd{u}')
def wait_ge1(p, S, soff, imm, val, vt, sleep=4):
    u = uid()
    p(f's_cmp_lg_u32 s{sW}, 0')
    p(f's_cbranch_scc1 L_w1{u}')
    wait_ge(p, S, soff, imm, val, vt, sleep)
    p.label(f'L_w1{u}')
    p('s_barrier')
def dbg_add(p, idx, va, vb, wave=0):
    u = uid()
    p(f's_cmp_lg_u32 s{sW}, {wave}')
    p(f's_cbranch_scc1 L_da{u}')
    p(f's_mov_b64 exec, 1')
    p(f'v_mov_b32 v{va}, 1')
    if isinstance(idx, int):
        p(f'buffer_atomic_add v{va}, off, {srd(S_DBG)}, 0 offset:{idx*4}')
    else:
        p(f'buffer_atomic_add v{va}, off, {srd(S_DBG)}, {idx} offset:{D_TEAM*4}')
    p(f's_mov_b64 exec, -1')
    p.label(f'L_da{u}')
def unpack2(lo, hi, src):
    return [f'v_lshlrev_b32 v{lo}, 16, v{src}', f'v_and_b32 v{hi}, 0xffff0000, v{src}']
def xsum4(p, x, t, op='v_add_f32'):
    p(f'v_mov_b32 v{t}, v{x}')
    p(f'v_permlane16_swap_b32 v{x}, v{t}')
    p(f'{op} v{x}, v{x}, v{t}')
    p(f'v_mov_b32 v{t}, v{x}')
    p(f'v_permlane32_swap_b32 v{x}, v{t}')
    p(f'{op} v{x}, v{x}, v{t}')

LIGHT = int(os.environ.get('LIGHT', 0))
def tl(p, k, vt):
    if not LIGHT: return
    p('s_memrealtime s[90:91]')
    p(f's_lshl_b32 s89, s{sTeam}, 5')
    p(f's_add_u32 s89, s89, s{sH}')
    p(f's_lshl_b32 s89, s89, 6')
    p(f's_add_u32 s89, s89, {WS_PROF + 32768}')
    p('s_waitcnt lgkmcnt(0)')
    p(f'v_mov_b32 v{vt}, s90')
    p(f'buffer_store_dword v{vt}, off, {srd(S_WS)}, s89 offset:{k*4}')
```

```python
from roles import *
GATE = int(os.environ.get('GATE', 24))
P_HB, P_KV, P_KM, P_VM, P_QX, P_OX, P_H2, P_HID, P_RED = 0, 32768, 49152, 53248, 57344, 65536, 73728, 106496, 110592
S_Q, S_O, S_1, S_2, S_X, S_OUT, S_B = 8, 12, 16, 20, 24, 60, 64
sSeg, sTB, sM32, sC, sR2, sR3, sHP, sPP, sSt = 35, 36, 38, 46, 47, 48, 49, 54, 50
sXo, sFl = 52, 53
vL16, vL16h, vPst, vPld, vHP, vCol, vHidw, vQo, vVf, vVm, vOw = range(1, 12)
GA, C1B, SB, GB, B2, B1, SEL, ONES, MASK, PZ, X1, XIN = 12, 16, 20, 24, 28, 32, 36, 40, 44, 52, 56, 60
W0 = 62
def WQ(t, ks): return 256 + (t * 16 + ks) * 4
def WO(i, ks): return 256 + 128 + (i * 4 + ks) * 4
def W1(ks): return 128 + ks * 4
def W2(i, ks): return 192 + (i * 2 + ks) * 4

def post_setup(p):
    build_srd(p, S_Q, 16, 4 * MB)
    build_srd(p, S_O, 40, 4 * MB)
    build_srd(p, S_1, 64, 512 * 1792 * 2)
    build_srd(p, S_2, 80, 512 * 1792 * 2)
    build_srd(p, S_X, 0, 2 * MB)
    build_srd(p, S_OUT, 112, 2 * MB)
    ids = lane_ids(p, 100)
    l, n, g, r, c = ids
    t, u = 105, 106
    vSrc, vSrc1, bQ, bO, b1 = 108, 109, 110, 112, 114
    p(f'v_lshlrev_b32 v{vL16}, 4, v{l}')
    p(f'v_add_u32 v{vL16h}, 0x10000, v{vL16}')
    p(f'v_lshlrev_b32 v{vSrc}, 13, v{g}')
    p(f'v_lshl_add_u32 v{vSrc}, v{n}, 4, v{vSrc}')
    p(f'v_lshrrev_b32 v{t}, 3, v{l}')
    p(f'v_mul_u32_u24 v{t}, 3584, v{t}')
    p(f'v_and_b32 v{u}, 7, v{l}')
    p(f'v_lshl_add_u32 v{vSrc1}, v{u}, 4, v{t}')
    tr_bases(p, bQ, 8, True, 6, 4, ids, t)
    tr_bases(p, bO, 10, False, 8, 4, ids, t)
    tr_bases(p, b1, 7, True, 5, 3, ids, t)
    p(f'v_lshlrev_b32 v{t}, 15, v{n}')
    p(f'v_lshl_add_u32 v{vPst}, v{g}, 4, v{t}')
    p(f'v_lshlrev_b32 v{t}, 10, v{g}')
    p(f'v_lshl_add_u32 v{vPld}, v{n}, 4, v{t}')
    p(f'v_lshlrev_b32 v{t}, 10, v{r}')
    p(f'v_lshl_add_u32 v{t}, v{c}, 8, v{t}')
    p(f'v_lshl_add_u32 v{vHP}, v{g}, 3, v{t}')
    p(f'v_lshlrev_b32 v{t}, 4, v{n}')
    p(f'v_lshl_add_u32 v{vCol}, v{g}, 3, v{t}')
    p(f's_lshr_b32 s{sT0}, s{sW}, 1')
    p(f's_lshl_b32 s{sT1}, s{sT0}, 10')
    p(f's_and_b32 s{sT2}, s{sW}, 1')
    p(f's_lshl_b32 s{sT3}, s{sT2}, 3')
    p(f's_add_u32 s{sT1}, s{sT1}, s{sT3}')
    p(f's_add_u32 s{sT1}, s{sT1}, {P_HID}')
    p(f'v_add_u32 v{vHidw}, s{sT1}, v{vL16}')
    p(f's_lshl_b32 s{sT3}, s{sT2}, 12')
    p(f'v_add_u32 v{vQo}, s{sT3}, v{vL16}')
    p(f's_lshl_b32 s{sT4}, s{sT0}, 12')
    p(f'v_add_u32 v{vVf}, s{sT4}, v{vL16}')
    p(f'v_lshrrev_b32 v{t}, 1, v{vL16}')
    p(f's_lshl_b32 s{sT4}, s{sT0}, 10')
    p(f'v_add_u32 v{vVm}, s{sT4}, v{t}')
    p(f's_lshl_b32 s{sT4}, s{sT0}, 11')
    p(f's_add_u32 s{sT4}, s{sT4}, s{sT3}')
    p(f'v_add_u32 v{vOw}, s{sT4}, v{vL16h}')
    p(f's_lshl_b32 s{sT3}, s{sT2}, 4')
    p(f'v_lshlrev_b32 v{t}, 2, v{g}')
    p(f'v_sub_u32 v{t}, v{n}, v{t}')
    p(f'v_add_u32 v{t}, s{sT3}, v{t}')
    p(f'v_mov_b32 v{u}, {f32(-1e30):#x}')
    for kt in range(2):
        for rr in range(4):
            p(f'v_cmp_gt_i32 vcc, {16*kt+rr}, v{t}')
            p(f'v_cndmask_b32 v{MASK+4*kt+rr}, 0, v{u}, vcc')
    for k in range(4): p(f'v_mov_b32 v{ONES+k}, 0x3f803f80')
    for k in range(4): p(f'v_mov_b32 v{PZ+k}, 0')
    p(f'v_mov_b32 v{t}, 0x3f80')
    p(f'v_mov_b32 v{u}, 0x3f800000')
    for k in range(4):
        p(f'v_mov_b32 v{SEL+k}, 0')
        p(f'v_cmp_eq_u32 vcc, {2*k}, v{n}')
        p(f'v_cndmask_b32 v{SEL+k}, v{SEL+k}, v{t}, vcc')
        p(f'v_cmp_eq_u32 vcc, {2*k+1}, v{n}')
        p(f'v_cndmask_b32 v{SEL+k}, v{SEL+k}, v{u}, vcc')
    p(f's_mov_b32 s{sM32}, -1')
    p(f's_mov_b32 s{sM32+1}, 0')
    p(f's_mov_b32 s{sC}, {f32(math.log2(math.e) / math.sqrt(128.0)):#x}')
    p(f's_sub_u32 s{sTB}, s{sTeam}, {1+NKV}')
    p(f's_mov_b32 s{sSeg}, s{sTB}')
    p(f's_lshl_b32 s{sTB}, s{sTB}, 22')
    p(f's_add_u32 s{sTB}, s{sTB}, {WS_TEAM}')
    p(f's_lshl_b32 s{sT0}, s{sH}, 15')
    p(f's_lshl_b32 s{sT1}, s{sW}, 8')
    p(f's_add_u32 s{sR2}, s{sT0}, s{sT1}')
    p(f's_add_u32 s{sR2}, s{sR2}, s{sTB}')
    p(f's_add_u32 s{sR3}, s{sR2}, {T_P3}')
    p(f's_lshl_b32 s{sT0}, s{sH}, 10')
    p(f's_add_u32 s{sSt}, s{sT0}, s{sT1}')
    p(f's_add_u32 s{sSt}, s{sSt}, s{sTB}')
    p(f's_lshr_b32 s{sT0}, s{sH}, 4')
    p(f's_lshl_b32 s{sT0}, s{sT0}, 14')
    p(f's_lshl_b32 s{sT1}, s{sW}, 12')
    p(f's_add_u32 s{sHP}, s{sT0}, s{sT1}')
    p(f's_and_b32 s{sT0}, s{sH}, 15')
    p(f's_lshl_b32 s{sT0}, s{sT0}, 4')
    p(f's_add_u32 s{sHP}, s{sHP}, s{sT0}')
    p(f's_add_u32 s{sHP}, s{sHP}, s{sTB}')
    p(f's_add_u32 s{sHP}, s{sHP}, {T_H2}')
    p('s_waitcnt lgkmcnt(0)')
    return vSrc, vSrc1, bQ, bO, b1, g

def resets(p, st, sbase, nload, NEG):
    p(f's_mov_b32 s{sT1}, s{sbase}')
    for u in range(nload):
        p(f'buffer_store_dwordx4 {v(NEG,4)}, v{vPld}, {srd(S_WS)}, s{sT1} offen {st}')
        if u < nload - 1: p(f's_add_u32 s{sT1}, s{sT1}, 4096')

def post_init_rings(p, st):
    NEG = W0
    for k in range(4): p(f'v_mov_b32 v{NEG+k}, -1')
    resets(p, st, sR2, 8, NEG)
    resets(p, st, sR3, 8, NEG)
    p(f's_mov_b64 exec, s[{sM32}:{sM32+1}]')
    p(f'buffer_store_dwordx2 {v(NEG,2)}, v{vHP}, {srd(S_WS)}, s{sHP} offen {st}')
    p('s_mov_b64 exec, -1')
    p('s_waitcnt vmcnt(0)')
    p('s_barrier')
    p(f's_lshl_b32 s{sT1}, s{sTeam}, 2')
    dbg_add(p, f's{sT1}', W0, W0 + 1)

def post_weights(p, H):
    vSrc, vSrc1, bQ, bO, b1, g = H
    sF = 37
    p(f's_min_u32 s{sF}, s{sH}, 27')
    def issue(c, sl):
        if c < 8: issue_headmat(p, S_Q, c, sl, vSrc)
        elif c < 16:
            p(f's_lshl_b32 s{sT3}, s{sH}, 17')
            issue_linear(p, S_O, sT3, (c - 8) * 16384, sl, vL16)
        elif c < 20:
            i = c - 16
            set_m0(p, sl)
            p(f's_mul_i32 s{sT1}, s{sW}, {32*3584}')
            p(f's_lshl_b32 s{sT2}, s{sF}, 7')
            p(f's_add_u32 s{sT1}, s{sT1}, s{sT2}')
            p(f's_add_u32 s{sT1}, s{sT1}, {128*i*3584}')
            for zz in range(4):
                p(f'buffer_load_dwordx4 v{vSrc1}, {srd(S_1)}, s{sT1} offen offset:{zz*1024} lds')
                if zz < 3: p(f's_add_u32 s{sT1}, s{sT1}, {8*3584-1024}')
        else:
            p(f's_lshl_b32 s{sT3}, s{sF}, 16')
            issue_linear(p, S_2, sT3, (c - 20) * 16384, sl, vL16)
    def consume(c, sl):
        if c < 8: consume_headmat(p, c, sl, bQ, True, 256)
        elif c < 16 or c >= 20:
            b = c - 8 if c < 16 else c - 20
            for i in range(8):
                imm = (sl % 4) * 16384 + (i >> 1) * 64 + (i & 1) * 8
                dst = (WO(i, b >> 1) if c < 16 else W2(i, b >> 1)) + 2 * (b & 1)
                p(f'ds_read_b64_tr_b16 {R(dst,2)}, v{bO + (sl >= 4)} offset:{imm}')
        else:
            i = c - 16
            for ksl in range(4):
                for hf in range(2):
                    imm = (sl % 4) * 16384 + (32 * ksl + 4 * hf) * 128
                    p(f'ds_read_b64_tr_b16 {R(W1(4*i+ksl)+2*hf,2)}, v{b1 + (sl >= 4)} offset:{imm}')
    if GATE: wait_ge1(p, S_DBG, '0', D_CW * 4, GATE, W0, sleep=16)
    staged_load(p, 24, issue, consume)
    tl(p, 2, W0)
    build_srd(p, S_B, 72, 3584)
    build_srd(p, S_Q, 88, 1024)
    wait_ge1(p, S_DBG, '0', D_MODB * 4, 32, W0)
    p('s_waitcnt lgkmcnt(0)')
    T = W0
    p(f's_lshl_b32 s{sT1}, s{sW}, 8')
    p(f's_add_u32 s{sT2}, s{sT1}, {WS_MOD}')
    for k, part in enumerate((2, 4, 3)):
        p(f'buffer_load_dwordx2 {v(T+2*k,2)}, v{vCol}, {srd(S_WS)}, s{sT2} offen offset:{part*1024 if part < 4 else 0} sc1' if part < 4 else
          f'buffer_load_dwordx2 {v(T+2*k,2)}, v{vCol}, {srd(S_WS)}, s{sT3} offen sc1')
        if k == 0: p(f's_add_u32 s{sT3}, s{sT2}, 4096')
    p(f'buffer_load_dwordx2 {v(T+6,2)}, v{vCol}, {srd(S_WS)}, s{sT3} offen offset:1024 sc1')
    p(f'buffer_load_dwordx2 {v(T+8,2)}, v{vCol}, {srd(S_Q)}, s{sT1} offen')
    p(f'v_lshlrev_b32 v{T+12}, 3, v{g}')
    p(f's_lshl_b32 s{sT1}, s{sF}, 7')
    p(f's_lshl_b32 s{sT2}, s{sW}, 5')
    p(f's_add_u32 s{sT1}, s{sT1}, s{sT2}')
    p(f'buffer_load_dwordx2 {v(T+10,2)}, v{T+12}, {srd(S_B)}, s{sT1} offen')
    p('s_waitcnt vmcnt(0)')
    for k, D in enumerate((GA, C1B, SB, GB, B2, B1)):
        for d in range(2):
            for x in unpack2(D + 2 * d, D + 2 * d + 1, T + 2 * k + d): p(x)

def dma_block(p, ssrc_setup, lds_off, n):
    k = 0
    while k < n:
        p(f's_mov_b32 m0, s{sT2}')
        p('s_nop 0')
        for zz in range(min(4, n - k)):
            p(f'buffer_load_dwordx4 v{vL16}, {srd(S_WS)}, s{sT1} offen offset:{zz*1024} sc1 lds')
        k += 4
        if k < n:
            p(f's_add_u32 s{sT1}, s{sT1}, 4096'); p(f's_add_u32 s{sT2}, s{sT2}, 4096')

def h_dma(p, sseg):
    wait_h(p, sseg, W0 + 2)
    p(f's_lshl_b32 s{sT1}, s{sseg}, 15')
    p(f's_lshl_b32 s{sT2}, s{sW}, 13')
    p(f's_add_u32 s{sT1}, s{sT1}, s{sT2}')
    p(f's_add_u32 s{sT1}, s{sT1}, {WS_HF}')
    dma_block(p, None, 0, 8)

def gather_reduce(p, tag, sbase, nload, D, RB):
    p(f's_mov_b32 s{sT4}, 0')
    p.label(f'L_g_{tag}')
    p(f's_mov_b32 s{sT1}, s{sbase}')
    for u in range(nload):
        p(f'buffer_load_dwordx4 {v(RB+4*u,4)}, v{vPld}, {srd(S_WS)}, s{sT1} offen sc1')
        if u < nload - 1: p(f's_add_u32 s{sT1}, s{sT1}, 4096')
    spin(p)
    for u in range(nload):
        p(f's_waitcnt vmcnt({nload-1-u})')
        p(M32(D, SEL, RB + 4 * u, '0' if u == 0 else D))
    p(f'v_cmp_u_f32 vcc, v{D}, v{D+1}')
    p(f'v_cmp_u_f32 s[{sPP}:{sPP+1}], v{D+2}, v{D+3}')
    p(f's_or_b64 vcc, vcc, s[{sPP}:{sPP+1}]')
    p(f's_cbranch_vccz L_gok_{tag}')
    t = D
    p(f'v_max3_u32 v{t}, v{RB}, v{RB+1}, v{RB+2}')
    for k in range(3, 4 * nload - 1, 2):
        p(f'v_max3_u32 v{t}, v{t}, v{RB+k}, v{RB+k+1}')
    p(f'v_max_u32 v{t}, v{t}, v{RB+4*nload-1}')
    p(f'v_cmp_eq_u32 vcc, -1, v{t}')
    p(f's_cbranch_vccnz L_g_{tag}')
    for u in range(nload): p(M32(D, SEL, RB + 4 * u, '0' if u == 0 else D))
    p.label(f'L_gok_{tag}')

def out_gemm(p, st, WF, nks, BF, sdst):
    ACCS = [W0 + 34, W0 + 50]
    p(f's_add_u32 s{sT3}, s{sdst}, {16*32768}')
    pend = []
    for pr in range(4):
        A = ACCS[pr & 1]
        mf = []
        for ks in range(nks):
            for tt in range(2):
                for t in range(2):
                    acc = A + 8 * tt + 4 * t
                    mf.append(M32(acc, WF(2 * pr + t, ks), BF(tt, ks), '0' if ks == 0 else acc))
        for k, m in enumerate(mf):
            p(m)
            if k >= 2:
                for _ in range(2):
                    if pend: p(pend.pop(0))
        for x in pend: p(x)
        pend = []
        for tt in range(2):
            a0, a1 = A + 8 * tt, A + 8 * tt + 4
            pend += [f'v_cvt_pk_bf16_f32 v{a0}, v{a0}, v{a0+1}', f'v_cvt_pk_bf16_f32 v{a0+1}, v{a0+2}, v{a0+3}',
                     f'v_cvt_pk_bf16_f32 v{a0+2}, v{a1}, v{a1+1}', f'v_cvt_pk_bf16_f32 v{a0+3}, v{a1+2}, v{a1+3}',
                     f'buffer_store_dwordx4 {v(a0,4)}, v{vPst}, {srd(S_WS)}, s{sdst if tt == 0 else sT3} offen offset:{pr*64} {st}']
    for x in pend: p(x)

def rowsum(p, x, t, slot):
    for d in ('quad_perm:[1,0,3,2]', 'quad_perm:[2,3,0,1]', 'row_half_mirror', 'row_mirror'):
        p(f'v_add_f32_dpp v{x}, v{x}, v{x} {d} row_mask:0xf bank_mask:0xf')
    p(f'v_mov_b32 v{t}, v{x}')
    p('s_mov_b64 exec, -1')
    p(f'v_permlane16_swap_b32 v{x}, v{t}')
    p(f's_mov_b64 exec, s[{sM32}:{sM32+1}]')
    p(f'v_add_f32 v{x}, v{x}, v{t}')
    p(f's_lshl_b32 s{sT1}, s{sW}, 2')
    p(f's_add_u32 s{sT1}, s{sT1}, {P_RED + slot*16}')
    p(f'v_mov_b32 v{t}, s{sT1}')
    p(f'ds_write_b32 v{t}, v{x}')
    p('s_waitcnt vmcnt(0) lgkmcnt(0)')
    p('s_barrier')
    p(f'v_mov_b32 v{t}, {P_RED + slot*16}')
    p(f'ds_read_b128 {v(t+2,4)}, v{t}')
    p('s_waitcnt lgkmcnt(0)')
    p(f'v_add_f32 v{t+2}, v{t+2}, v{t+3}')
    p(f'v_add_f32 v{t+4}, v{t+4}, v{t+5}')
    p(f'v_add_f32 v{x}, v{t+2}, v{t+4}')

def post_loop(p, st):
    tg = 's' if st else 'f'
    p(f's_lshl_b32 s{sT1}, s{sTeam}, 2')
    wait_ge1(p, S_DBG, f's{sT1}', D_TEAM * 4, 32, W0)
    h_dma(p, sSeg)
    p.label(f'L_post_{tg}')
    p(f's_lshl_b32 s{sXo}, s{sSeg}, 5')
    p(f's_add_u32 s{sFl}, s{sXo}, s{sH}')
    p(f's_lshl_b32 s{sXo}, s{sFl}, 10')
    p(f's_lshl_b32 s{sT1}, s{sW}, 8')
    p(f's_add_u32 s{sXo}, s{sXo}, s{sT1}')
    p(f'buffer_load_dwordx2 {v(XIN,2)}, v{vCol}, {srd(S_X)}, s{sXo} offen')
    p('s_waitcnt vmcnt(0)')
    p('s_barrier')
    HFR = [W0, W0 + 8, W0 + 16]
    QA = [[W0 + 24, W0 + 28], [W0 + 32, W0 + 36]]
    def hrd(ks, base):
        s_ = HFR[ks % 3]
        return [f'ds_read_b128 {v(s_,4)}, v{vL16 if base < 65536 else vL16h} offset:{(base & 65535)+ks*1024}',
                f'ds_read_b128 {v(s_+4,4)}, v{vL16 if base < 65536 else vL16h} offset:{(base & 65535)+16384+ks*1024}']
    for x in hrd(0, P_HB) + hrd(1, P_HB): p(x)
    for ks in range(16):
        if ks + 2 < 16:
            for x in hrd(ks + 2, P_HB): p(x)
            p('s_waitcnt lgkmcnt(4)')
        else: p(f's_waitcnt lgkmcnt({2 if ks == 14 else 0})')
        for rt in range(2):
            for t in range(2):
                p(M32(QA[rt][t], WQ(t, ks), HFR[ks % 3] + 4 * rt, '0' if ks == 0 else QA[rt][t]))
    p(f's_lshl_b32 s{sT1}, s{sW}, 10')
    p(f'v_add_u32 v{W0}, s{sT1}, v{vL16}')
    for rt in range(2):
        a0, a1 = QA[rt]
        p(f'v_cvt_pk_bf16_f32 v{a0}, v{a0}, v{a0+1}'); p(f'v_cvt_pk_bf16_f32 v{a0+1}, v{a0+2}, v{a0+3}')
        p(f'v_cvt_pk_bf16_f32 v{a0+2}, v{a1}, v{a1+1}'); p(f'v_cvt_pk_bf16_f32 v{a0+3}, v{a1+2}, v{a1+3}')
        p(f'ds_write_b128 v{W0}, {v(a0,4)} offset:{P_QX+rt*4096}')
    p(f's_lshl_b32 s{sT3}, s{sH}, 6')
    p(f's_add_u32 s{sT3}, s{sT3}, s{sSeg}')
    p(f's_lshl_b32 s{sT3}, s{sT3}, 2')
    p(f's_add_u32 s{sT3}, s{sT3}, {WS_FKV}')
    wait_ge(p, S_WS, f's{sT3}', 0, 1, W0 + 1)
    p(f's_lshl_b32 s{sT1}, s{sFl}, 14')
    p(f's_lshl_b32 s{sT2}, s{sW}, 12')
    p(f's_add_u32 s{sT1}, s{sT1}, s{sT2}')
    p(f's_add_u32 s{sT2}, s{sT2}, {P_KV}')
    dma_block(p, None, 0, 4)
    p(f's_lshl_b32 s{sT3}, s{sH}, 7')
    p(f's_add_u32 s{sT3}, s{sT3}, s{sSeg}')
    p(f's_lshl_b32 s{sT3}, s{sT3}, 2')
    p(f's_add_u32 s{sT3}, s{sT3}, {WS_FMEM + 4}')
    tl(p, 3, W0 + 1)
    wait_ge(p, S_WS, f's{sT3}', 0, 1, W0 + 1, sleep=1)
    tl(p, 4, W0 + 1)
    p(f's_lshl_b32 s{sT1}, s{sFl}, 12')
    p(f's_lshl_b32 s{sT2}, s{sW}, 10')
    p(f's_add_u32 s{sT1}, s{sT1}, s{sT2}')
    p(f's_add_u32 s{sT1}, s{sT1}, {WS_KM}')
    p(f's_add_u32 s{sT2}, s{sT2}, {P_KM}')
    dma_block(p, None, 0, 1)
    p(f's_and_b32 s{sT2}, s{sW}, 1')
    p(f's_lshl_b32 s{sT2}, s{sT2}, 10')
    p(f's_lshl_b32 s{sT1}, s{sFl}, 11')
    p(f's_add_u32 s{sT1}, s{sT1}, s{sT2}')
    p(f's_add_u32 s{sT1}, s{sT1}, {WS_VM}')
    p(f's_add_u32 s{sT2}, s{sT2}, {P_VM}')
    dma_block(p, None, 0, 1)
    p('s_waitcnt vmcnt(0) lgkmcnt(0)')
    p('s_barrier')
    p(f's_add_u32 s{sT3}, s{sSeg}, {NPOST}')
    p(f's_cmp_ge_u32 s{sT3}, 64')
    p(f's_cbranch_scc1 L_nohd_{tg}')
    h_dma(p, sT3)
    p.label(f'L_nohd_{tg}')
    QOP, KA, KB, S0, S1, S2 = W0, W0 + 16, W0 + 32, W0 + 48, W0 + 52, W0 + 56
    T0, T1 = W0 + 60, W0 + 61
    for k in range(4): p(f'ds_read_b128 {v(QOP+4*k,4)}, v{vQo} offset:{P_QX+k*1024}')
    for k in range(4): p(f'ds_read_b128 {v(KA+4*k,4)}, v{vL16} offset:{P_KM+k*1024}')
    for k in range(4): p(f'ds_read_b128 {v(KB+4*k,4)}, v{vL16} offset:{P_KV+k*1024}')
    p('s_waitcnt lgkmcnt(4)')
    for k in range(4): p(M32(S2, KA + 4 * k, QOP + 4 * k, '0' if k == 0 else S2))
    for k in range(4): p(f'ds_read_b128 {v(KA+4*k,4)}, v{vL16} offset:{P_KV+4096+k*1024}')
    p('s_waitcnt lgkmcnt(4)')
    for k in range(4): p(M32(S0, KB + 4 * k, QOP + 4 * k, MASK if k == 0 else S0))
    VF, VMR = KB, W0 + 62
    for k in range(4): p(f'ds_read_b128 {v(VF+4*k,4)}, v{vVf} offset:{P_KV+8192+k*1024}')
    for k in range(2): p(f'ds_read_b64 {v(VMR+2*k,2)}, v{vVm} offset:{P_VM+k*512}')
    p('s_waitcnt lgkmcnt(6)')
    for k in range(4): p(M32(S1, KA + 4 * k, QOP + 4 * k, MASK + 4 if k == 0 else S1))
    m = T0
    p(f'v_max3_f32 v{m}, v{S2}, v{S2+1}, v{S0}')
    p(f'v_max3_f32 v{m}, v{m}, v{S0+1}, v{S0+2}')
    p(f'v_max3_f32 v{m}, v{m}, v{S0+3}, v{S1}')
    p(f'v_max3_f32 v{m}, v{m}, v{S1+1}, v{S1+2}')
    p(f'v_max_f32 v{m}, v{m}, v{S1+3}')
    xsum4(p, m, T1, 'v_max_f32')
    p(f'v_mul_f32 v{m}, s{sC}, v{m}')
    vals = [S0, S0 + 1, S0 + 2, S0 + 3, S1, S1 + 1, S1 + 2, S1 + 3, S2, S2 + 1]
    for r in vals: p(f'v_fma_f32 v{r}, v{r}, s{sC}, -v{m}')
    for r in vals: p(f'v_exp_f32 v{r}, v{r}')
    P01 = QOP
    p(f'v_cvt_pk_bf16_f32 v{P01}, v{S0}, v{S0+1}'); p(f'v_cvt_pk_bf16_f32 v{P01+1}, v{S0+2}, v{S0+3}')
    p(f'v_cvt_pk_bf16_f32 v{P01+2}, v{S1}, v{S1+1}'); p(f'v_cvt_pk_bf16_f32 v{P01+3}, v{S1+2}, v{S1+3}')
    p(f'v_cvt_pk_bf16_f32 v{PZ}, v{S2}, v{S2+1}'); p(f'v_cvt_pk_bf16_f32 v{PZ+3}, v{S2}, v{S2+1}')
    LA, OA = QOP + 4, KA
    p('s_waitcnt lgkmcnt(0)')
    p(M32(LA, ONES, P01, '0'))
    for k in range(4): p(M32(OA + 4 * k, VF + 4 * k, P01, '0'))
    p(M16(LA, ONES, PZ, LA))
    for k in range(4): p(M16(OA + 4 * k, VMR + 2 * (k >> 1), PZ + 2 * (k & 1), OA + 4 * k))
    p(f'v_rcp_f32 v{T0}, v{LA}')
    for k in range(16): p(f'v_mul_f32 v{OA+k}, v{OA+k}, v{T0}')
    for i in range(2):
        a0, a1 = OA + 8 * i, OA + 8 * i + 4
        p(f'v_cvt_pk_bf16_f32 v{a0}, v{a0}, v{a0+1}'); p(f'v_cvt_pk_bf16_f32 v{a0+1}, v{a0+2}, v{a0+3}')
        p(f'v_cvt_pk_bf16_f32 v{a0+2}, v{a1}, v{a1+1}'); p(f'v_cvt_pk_bf16_f32 v{a0+3}, v{a1+2}, v{a1+3}')
        p(f'ds_write_b128 v{vOw}, {v(a0,4)} offset:{(P_OX & 65535)+i*1024}')
    p('s_waitcnt lgkmcnt(0)')
    p('s_barrier')
    OF = W0 + 2 - 2
    for k in range(8): p(f'ds_read_b128 {v(OF+4*k,4)}, v{vL16h} offset:{(P_OX & 65535)+k*1024}')
    p('s_waitcnt lgkmcnt(0)')
    out_gemm(p, st, WO, 4, lambda tt, ks: OF + 4 * (tt * 4 + ks), sSt)
    tl(p, 6, W0)
    D, RB, T = W0 + 34, W0, W0 + 40
    gather_reduce(p, f'a{tg}', sR2, 8, D, RB)
    NEG = W0 + 48
    for k in range(4): p(f'v_mov_b32 v{NEG+k}, -1')
    resets(p, st, sR2, 8, NEG)
    p(f's_mov_b64 exec, s[{sM32}:{sM32+1}]')
    p(f'v_cvt_pk_bf16_f32 v{D}, v{D}, v{D+1}'); p(f'v_cvt_pk_bf16_f32 v{D+1}, v{D+2}, v{D+3}')
    for d in range(2):
        for x in unpack2(RB + 2 * d, RB + 2 * d + 1, D + d): p(x)
        for x in unpack2(X1 + 2 * d, X1 + 2 * d + 1, XIN + d): p(x)
    for k in range(4): p(f'v_fmac_f32 v{X1+k}, v{RB+k}, v{GA+k}')
    p(f'v_cvt_pk_bf16_f32 v{D}, v{X1}, v{X1+1}'); p(f'v_cvt_pk_bf16_f32 v{D+1}, v{X1+2}, v{X1+3}')
    for d in range(2):
        for x in unpack2(X1 + 2 * d, X1 + 2 * d + 1, D + d): p(x)
    sm = RB + 8
    p(f'v_add_f32 v{sm}, v{X1}, v{X1+1}'); p(f'v_add_f32 v{sm}, v{sm}, v{X1+2}'); p(f'v_add_f32 v{sm}, v{sm}, v{X1+3}')
    rowsum(p, sm, RB + 10, 0)
    p(f'v_mul_f32 v{sm}, {f32(1/512):#x}, v{sm}')
    for k in range(4): p(f'v_sub_f32 v{RB+k}, v{X1+k}, v{sm}')
    p(f'v_mul_f32 v{sm}, v{RB}, v{RB}')
    for k in range(1, 4): p(f'v_fmac_f32 v{sm}, v{RB+k}, v{RB+k}')
    rowsum(p, sm, RB + 10, 1)
    p(f'v_mov_b32 v{sm+1}, {f32(1e-5):#x}')
    p(f'v_fmac_f32 v{sm+1}, {f32(1/512):#x}, v{sm}')
    p(f'v_rsq_f32 v{sm}, v{sm+1}')
    for k in range(4): p(f'v_mul_f32 v{RB+k}, v{RB+k}, v{sm}')
    for k in range(4): p(f'v_fma_f32 v{RB+k}, v{RB+k}, v{C1B+k}, v{SB+k}')
    p(f'v_cvt_pk_bf16_f32 v{D}, v{RB}, v{RB+1}'); p(f'v_cvt_pk_bf16_f32 v{D+1}, v{RB+2}, v{RB+3}')
    p(f'buffer_store_dwordx2 {v(D,2)}, v{vHP}, {srd(S_WS)}, s{sHP} offen {st}')
    p('s_mov_b64 exec, -1')
    tl(p, 7, W0)
    p(f's_cmp_ge_u32 s{sH}, 28')
    p(f's_cbranch_scc1 L_nomlp_{tg}')
    p(f's_lshl_b32 s{sT2}, s{sW}, 13')
    p(f's_add_u32 s{sT3}, s{sT2}, s{sTB}')
    p(f's_add_u32 s{sT3}, s{sT3}, {T_H2}')
    p(f's_add_u32 s{sT4}, s{sT3}, 4096')
    p(f'v_add_u32 v{T}, s{sT2}, v{vL16h}')
    p.label(f'L_h2_{tg}')
    for u in range(8):
        p(f'buffer_load_dwordx4 {v(RB+4*u,4)}, v{vL16}, {srd(S_WS)}, s{sT3 if u < 4 else sT4} offen offset:{(u%4)*1024} sc1')
    spin(p)
    p('s_waitcnt vmcnt(0)')
    p(f'v_max3_u32 v{D}, v{RB}, v{RB+1}, v{RB+2}')
    for k in range(3, 31, 2): p(f'v_max3_u32 v{D}, v{D}, v{RB+k}, v{RB+k+1}')
    p(f'v_max_u32 v{D}, v{D}, v{RB+31}')
    p(f'v_cmp_eq_u32 vcc, -1, v{D}')
    p(f's_cbranch_vccnz L_h2_{tg}')
    for u in range(8): p(f'ds_write_b128 v{T}, {v(RB+4*u,4)} offset:{(P_H2 & 65535)+u*1024}')
    p('s_waitcnt lgkmcnt(0)')
    p('s_barrier')
    HA = [W0 + 24, W0 + 28]
    for x in hrd(0, P_H2) + hrd(1, P_H2): p(x)
    for ks in range(16):
        if ks + 2 < 16:
            for x in hrd(ks + 2, P_H2): p(x)
            p('s_waitcnt lgkmcnt(4)')
        else: p(f's_waitcnt lgkmcnt({2 if ks == 14 else 0})')
        for tt in range(2):
            p(M32(HA[tt], W1(ks), HFR[ks % 3] + 4 * tt, B1 if ks == 0 else HA[tt]))
    k0 = -2.0 * math.log2(math.e) * math.sqrt(2.0 / math.pi)
    p(f's_mov_b32 s{sT1}, {f32(k0 * 0.044715):#x}')
    G = W0 + 32
    p(f'v_mov_b32 v{G+8}, {f32(k0):#x}')
    xs = [HA[0] + k for k in range(4)] + [HA[1] + k for k in range(4)]
    for k, x in enumerate(xs): p(f'v_mul_f32 v{G+k}, v{x}, v{x}')
    for k, x in enumerate(xs): p(f'v_fma_f32 v{G+k}, v{G+k}, s{sT1}, v{G+8}')
    for k, x in enumerate(xs): p(f'v_mul_f32 v{G+k}, v{G+k}, v{x}')
    for k, x in enumerate(xs): p(f'v_exp_f32 v{G+k}, v{G+k}')
    for k, x in enumerate(xs): p(f'v_add_f32 v{G+k}, 1.0, v{G+k}')
    for k, x in enumerate(xs): p(f'v_rcp_f32 v{G+k}, v{G+k}')
    for k, x in enumerate(xs): p(f'v_mul_f32 v{x}, v{x}, v{G+k}')
    for tt in range(2):
        a0 = HA[tt]
        p(f'v_cvt_pk_bf16_f32 v{a0}, v{a0}, v{a0+1}'); p(f'v_cvt_pk_bf16_f32 v{a0+1}, v{a0+2}, v{a0+3}')
        p(f'ds_write_b64 v{vHidw}, {v(a0,2)} offset:{tt*2048}')
    p('s_waitcnt lgkmcnt(0)')
    p('s_barrier')
    for k in range(4): p(f'ds_read_b128 {v(OF+4*k,4)}, v{vL16h} offset:{(P_HID & 65535)+k*1024}')
    p(f's_add_u32 s{sT4}, s{sSt}, {T_P3}')
    p('s_waitcnt lgkmcnt(0)')
    out_gemm(p, st, W2, 2, lambda tt, ks: OF + 4 * (tt * 2 + ks), sT4)
    p.label(f'L_nomlp_{tg}')
    tl(p, 8, W0 + 40)
    gather_reduce(p, f'b{tg}', sR3, 7, D, RB)
    for k in range(4): p(f'v_mov_b32 v{NEG+k}, -1')
    p(f's_mov_b64 exec, s[{sM32}:{sM32+1}]')
    for k in range(4): p(f'v_add_f32 v{D+k}, v{D+k}, v{B2+k}')
    for k in range(4): p(f'v_fmac_f32 v{X1+k}, v{D+k}, v{GB+k}')
    p(f'v_cvt_pk_bf16_f32 v{D}, v{X1}, v{X1+1}'); p(f'v_cvt_pk_bf16_f32 v{D+1}, v{X1+2}, v{X1+3}')
    p(f'buffer_store_dwordx2 {v(D,2)}, v{vCol}, {srd(S_OUT)}, s{sXo} offen')
    p(f'buffer_store_dwordx2 {v(NEG,2)}, v{vHP}, {srd(S_WS)}, s{sHP} offen {st}')
    p('s_mov_b64 exec, -1')
    resets(p, st, sR3, 7, NEG)
    p(f's_add_u32 s{sSeg}, s{sSeg}, {NPOST}')
    p(f's_cmp_lt_u32 s{sSeg}, 64')
    p(f's_cbranch_scc1 L_post_{tg}')
    tl(p, 5, W0)
    p('s_branch L_end')
```

```python
from common import *

def staged_load(p, n, issue, consume, per=4, nslots=8, pre=True):
    depth = nslots - 1
    if pre:
        for c in range(min(depth, n)): issue(c, c % nslots)
    for c in range(n):
        issued = min(c + depth - 1, n - 1)
        p(f's_waitcnt vmcnt({(issued - c) * per})')
        p('s_barrier')
        if c + depth < n: issue(c + depth, (c + depth) % nslots)
        consume(c, c % nslots)
        p('s_waitcnt lgkmcnt(0)')
    p('s_barrier')

def set_m0(p, slot):
    p(f's_lshl_b32 s{sT0}, s{sW}, 12')
    p(f's_add_u32 s{sT0}, s{sT0}, {slot*16384}')
    p(f's_mov_b32 m0, s{sT0}')

def issue_headmat(p, S, i, slot, vsrc):
    set_m0(p, slot)
    p(f's_lshl_b32 s{sT1}, s{sW}, 17')
    p(f's_lshl_b32 s{sT2}, s{sH}, 8')
    p(f's_add_u32 s{sT1}, s{sT1}, s{sT2}')
    p(f's_add_u32 s{sT1}, s{sT1}, {64*i*8192}')
    for zz in range(4):
        p(f'buffer_load_dwordx4 v{vsrc}, {srd(S)}, s{sT1} offen offset:{zz*1024} lds')
        if zz < 3: p(f's_add_u32 s{sT1}, s{sT1}, {4*8192-1024}')

def issue_linear(p, S, sbase, off, slot, vL16):
    set_m0(p, slot)
    p(f's_lshl_b32 s{sT2}, s{sW}, 12')
    p(f's_add_u32 s{sT1}, s{sbase}, s{sT2}')
    p(f's_add_u32 s{sT1}, s{sT1}, {off}')
    for zz in range(4):
        p(f'buffer_load_dwordx4 v{vL16}, {srd(S)}, s{sT1} offen offset:{zz*1024} lds')

def lane_ids(p, base):
    l, n, g, r, c = range(base, base + 5)
    p(f'v_and_b32 v{l}, 63, v0')
    p(f'v_and_b32 v{n}, 15, v0')
    p(f'v_lshrrev_b32 v{g}, 4, v{l}')
    p(f'v_lshrrev_b32 v{r}, 2, v{n}')
    p(f'v_and_b32 v{c}, 3, v0')
    return l, n, g, r, c

def mod_task(p, sT):
    build_srd(p, 8, 96, 1024)
    build_srd(p, 12, 104, 512 * 3072 * 2)
    p('s_waitcnt lgkmcnt(0)')
    p('v_lshlrev_b32 v1, 2, v0')
    p(f'buffer_load_dword v2, v1, {srd(8)}, 0 offen')
    p('v_lshrrev_b32 v3, 3, v0')
    p('v_mul_u32_u24 v3, 6144, v3')
    p('v_and_b32 v4, 7, v0')
    p('v_lshl_add_u32 v3, v4, 4, v3')
    p(f's_lshl_b32 s{sT1}, s{sT}, 7')
    for i in range(16):
        p(f'buffer_load_dwordx4 {v(32+4*i,4)}, v3, {srd(12)}, s{sT1} offen')
        if i < 15: p(f's_add_u32 s{sT1}, s{sT1}, {32*6144}')
    p('s_waitcnt vmcnt(16)')
    for x in unpack2(4, 5, 2): p(x)
    k = f32(-math.log2(math.e))
    for r in (4, 5):
        p(f'v_mul_f32 v{r+2}, {k:#x}, v{r}')
        p(f'v_exp_f32 v{r+2}, v{r+2}')
        p(f'v_add_f32 v{r+2}, 1.0, v{r+2}')
        p(f'v_rcp_f32 v{r+2}, v{r+2}')
        p(f'v_mul_f32 v{r}, v{r}, v{r+2}')
    p('v_cvt_pk_bf16_f32 v2, v4, v5')
    for x in unpack2(4, 5, 2): p(x)
    p('v_lshlrev_b32 v6, 3, v0')
    p('ds_write_b64 v6, v[4:5]')
    p('s_waitcnt lgkmcnt(0)')
    p('s_barrier')
    p('v_lshrrev_b32 v6, 3, v0')
    p('v_lshlrev_b32 v6, 2, v6')
    for i in range(16):
        p(f'ds_read_b32 v{16+i}, v6 offset:{i*128}')
    for j in range(8): p(f'v_mov_b32 v{8+j}, 0')
    p('s_waitcnt lgkmcnt(0)')
    for i in range(16):
        p(f's_waitcnt vmcnt({15-i})')
        for d in range(4):
            for x in unpack2(4, 5, 32 + 4 * i + d): p(x)
            p(f'v_fmac_f32 v{8+2*d}, v4, v{16+i}')
            p(f'v_fmac_f32 v{9+2*d}, v5, v{16+i}')
    p('v_lshlrev_b32 v6, 5, v0')
    p('ds_write_b128 v6, v[8:11] offset:4096')
    p('ds_write_b128 v6, v[12:15] offset:4112')
    p('s_waitcnt lgkmcnt(0)')
    p('s_barrier')
    u = uid()
    p(f's_cmp_lg_u32 s{sW}, 0')
    p(f's_cbranch_scc1 L_mt{u}')
    for i in range(32):
        p(f'ds_read_b32 v{16+i}, v1 offset:{4096+i*256}')
        if i % 8 == 7:
            p('s_waitcnt lgkmcnt(0)')
    for i in range(1, 32): p(f'v_add_f32 v16, v16, v{16+i}')
    p('v_cvt_pk_bf16_f32 v16, v16, v16')
    p(f's_lshr_b32 s{sT1}, s{sT}, 3')
    p(f's_cmp_eq_u32 s{sT1}, 1')
    p(f's_cselect_b32 s{sT2}, 1.0, 0')
    p(f's_cmp_eq_u32 s{sT1}, 4')
    p(f's_cselect_b32 s{sT2}, 1.0, s{sT2}')
    p('v_lshlrev_b32 v16, 16, v16')
    p(f'v_add_f32 v16, s{sT2}, v16')
    p('v_cvt_pk_bf16_f32 v16, v16, v16')
    p('v_lshlrev_b32 v6, 1, v0')
    p(f's_lshl_b32 s{sT1}, s{sT}, 7')
    p(f's_add_u32 s{sT1}, s{sT1}, {WS_MOD}')
    p(f'buffer_store_short v16, v6, {srd(S_WS)}, s{sT1} offen sc1')
    p('s_waitcnt vmcnt(0)')
    p(f's_cmp_lt_u32 s{sT}, 16')
    p(f's_cselect_b32 s{sT1}, {D_MODA*4}, {D_MODB*4}')
    p('s_mov_b64 exec, 1')
    p('v_mov_b32 v6, 1')
    p(f'buffer_atomic_add v6, off, {srd(S_DBG)}, s{sT1}')
    p('s_mov_b64 exec, -1')
    p.label(f'L_mt{u}')
    p('s_barrier')

def ln1_task(p, sT):
    build_srd(p, 8, 0, 2 * MB)
    l, n, g, r, c = lane_ids(p, 1)
    p(f'v_lshlrev_b32 v6, 10, v{n}')
    p(f'v_lshl_add_u32 v6, v{g}, 4, v6')
    p(f's_lshl_b32 s{sT1}, s{sT}, 14')
    p(f's_lshl_b32 s{sT2}, s{sW}, 8')
    p(f's_add_u32 s{sT1}, s{sT1}, s{sT2}')
    p('s_waitcnt lgkmcnt(0)')
    for k in range(4):
        p(f'buffer_load_dwordx4 {v(16+4*k,4)}, v6, {srd(8)}, s{sT1} offen offset:{k*64}')
    X = 32
    for k in range(4):
        p(f's_waitcnt vmcnt({3-k})')
        for d in range(4):
            for x in unpack2(X + 8 * k + 2 * d, X + 8 * k + 2 * d + 1, 16 + 4 * k + d): p(x)
    def reduce(val, slot):
        xsum4(p, val, 9)
        p(f's_lshl_b32 s{sT2}, s{sW}, 6')
        p(f'v_lshlrev_b32 v9, 2, v{n}')
        p(f'v_add_u32 v10, s{sT2}, v9')
        p(f'ds_write_b32 v10, v{val} offset:{slot*256}')
        p('s_waitcnt lgkmcnt(0)')
        p('s_barrier')
        for k in range(4): p(f'ds_read_b32 v{12+k}, v9 offset:{slot*256+k*64}')
        p('s_waitcnt lgkmcnt(0)')
        p(f'v_add_f32 v12, v12, v13'); p(f'v_add_f32 v14, v14, v15'); p(f'v_add_f32 v{val}, v12, v14')
    p(f'v_add_f32 v8, v{X}, v{X+1}')
    for k in range(2, 32): p(f'v_add_f32 v8, v8, v{X+k}')
    reduce(8, 0)
    p(f'v_mul_f32 v8, {f32(1/512):#x}, v8')
    for k in range(32): p(f'v_sub_f32 v{X+k}, v{X+k}, v8')
    p(f'v_mul_f32 v8, v{X}, v{X}')
    for k in range(1, 32): p(f'v_fmac_f32 v8, v{X+k}, v{X+k}')
    reduce(8, 1)
    p(f'v_mov_b32 v9, {f32(1e-5):#x}')
    p(f'v_fmac_f32 v9, {f32(1/512):#x}, v8')
    p(f'v_rsq_f32 v8, v9')
    wait_ge1(p, S_DBG, '0', D_MODA * 4, 16, 9, sleep=2)
    p(f'v_lshlrev_b32 v7, 4, v{g}')
    p(f's_lshl_b32 s{sT2}, s{sW}, 8')
    p(f's_add_u32 s{sT2}, s{sT2}, {WS_MOD}')
    for k in range(4):
        p(f'buffer_load_dwordx4 {v(64+4*k,4)}, v7, {srd(S_WS)}, s{sT2} offen offset:{k*64} sc1')
        p(f'buffer_load_dwordx4 {v(80+4*k,4)}, v7, {srd(S_WS)}, s{sT2} offen offset:{1024+k*64} sc1')
    for k in range(32): p(f'v_mul_f32 v{X+k}, v{X+k}, v8')
    p(f'v_lshlrev_b32 v7, 4, v{l}')
    p(f's_lshl_b32 s{sT1}, s{sT}, 14')
    p(f's_lshl_b32 s{sT2}, s{sW}, 12')
    p(f's_add_u32 s{sT1}, s{sT1}, s{sT2}')
    p(f's_add_u32 s{sT1}, s{sT1}, {WS_HF}')
    p('s_waitcnt vmcnt(0)')
    for k in range(4):
        for d in range(4):
            for x in unpack2(10, 11, 64 + 4 * k + d): p(x)
            for x in unpack2(12, 13, 80 + 4 * k + d): p(x)
            p(f'v_fmac_f32 v10, v{X+8*k+2*d}, v12')
            p(f'v_fmac_f32 v11, v{X+8*k+2*d+1}, v13')
            p(f'v_cvt_pk_bf16_f32 v{16+4*k+d}, v10, v11')
        p(f'buffer_store_dwordx4 {v(16+4*k,4)}, v7, {srd(S_WS)}, s{sT1} offen offset:{k*1024} sc1')
    p('s_waitcnt vmcnt(0)')
    p('s_barrier')

def tr_bases(p, dst, rowmul_shift, natural, wshift, cshift, ids, tmp):
    l, n, g, r, c = ids
    p(f'v_lshl_add_u32 v{tmp}, v{g}, {3 if natural else 2}, v{r}')
    p(f'v_lshlrev_b32 v{tmp}, {rowmul_shift}, v{tmp}')
    p(f'v_lshl_add_u32 v{tmp}, v{c}, {cshift}, v{tmp}')
    p(f's_lshl_b32 s{sT0}, s{sW}, {wshift}')
    p(f'v_add_u32 v{dst}, s{sT0}, v{tmp}')
    p(f'v_add_u32 v{dst+1}, 0x10000, v{dst}')

def consume_headmat(p, i, slot, base_pair, pair, reg0):
    b = base_pair + (slot >= 4)
    for ksl in range(2):
        for t in range(2):
            for hf in range(2):
                imm = (slot % 4) * 16384 + (32 * ksl + 4 * hf) * 256 + (8 * t if pair else 32 * t)
                p(f'ds_read_b64_tr_b16 {R(reg0 + (t*16 + 2*i + ksl)*4 + 2*hf, 2)}, v{b} offset:{imm}')

KV_R = dict(vL16=1, vSrc=2, bP=4, bN=6)
def kv_issue(p, c_, sl): issue_headmat(p, 8 if c_ < 8 else 12, c_ % 8, sl, 2)
def kv_pre(p):
    build_srd(p, 8, 24, 4 * MB)
    build_srd(p, 12, 32, 4 * MB)
    ids = lane_ids(p, 100)
    l, n, g, r, c = ids
    vL16, vSrc, bP, bN = 1, 2, 4, 6
    p(f'v_lshlrev_b32 v{vL16}, 4, v{l}')
    p(f'v_lshlrev_b32 v{vSrc}, 13, v{g}')
    p(f'v_lshl_add_u32 v{vSrc}, v{n}, 4, v{vSrc}')
    tr_bases(p, bP, 8, True, 6, 4, ids, 105)
    tr_bases(p, bN, 8, True, 6, 3, ids, 105)
    p('s_waitcnt lgkmcnt(0)')
    for c_ in range(7): kv_issue(p, c_, c_)

def wait_h(p, sseg, vt):
    u = uid()
    p(f's_lshl_b32 s{sT1}, s{sseg}, 3')
    p(f's_add_u32 s{sT1}, s{sT1}, {WS_FH}')
    p.label(f'L_wh{u}')
    p(f'buffer_load_dwordx2 {v(vt,2)}, off, {srd(S_WS)}, s{sT1} sc1')
    spin(p)
    p('s_waitcnt vmcnt(0)')
    p(f'v_min_u32 v{vt}, v{vt}, v{vt+1}')
    p(f'v_readfirstlane_b32 s{sT0}, v{vt}')
    p(f's_cmp_lg_u32 s{sT0}, 0')
    p(f's_cbranch_scc1 L_whd{u}')
    p('s_sleep 2')
    p(f's_branch L_wh{u}')
    p.label(f'L_whd{u}')

def kv_role(p):
    vL16, vSrc, bP, bN = 1, 2, 4, 6
    staged_load(p, 16, lambda c_, sl: kv_issue(p, c_, sl),
                lambda c_, sl: consume_headmat(p, c_ % 8, sl, bP if c_ < 8 else bN, c_ < 8, 256 + (0 if c_ < 8 else 128)), pre=False)
    tl(p, 2, 9)
    sSeg, sPrev, sBuf, sO = 35, 36, 37, 38
    def hdma():
        wait_h(p, sSeg, 10)
        p(f's_lshl_b32 s{sT1}, s{sSeg}, 15')
        p(f's_lshl_b32 s{sT2}, s{sW}, 13')
        p(f's_add_u32 s{sT1}, s{sT1}, s{sT2}')
        p(f's_add_u32 s{sT1}, s{sT1}, {WS_HF}')
        p(f's_add_u32 s{sT2}, s{sT2}, s{sBuf}')
        for q in range(2):
            p(f's_mov_b32 m0, s{sT2}')
            p('s_nop 0')
            for zz in range(4):
                p(f'buffer_load_dwordx4 v{vL16}, {srd(S_WS)}, s{sT1} offen offset:{zz*1024} sc1 lds')
            if q == 0:
                p(f's_add_u32 s{sT1}, s{sT1}, 4096'); p(f's_add_u32 s{sT2}, s{sT2}, 4096')
    def flag():
        u = uid()
        p(f's_cmp_lg_u32 s{sW}, 0')
        p(f's_cbranch_scc1 L_kf{u}')
        p(f's_cmp_ge_u32 s{sPrev}, 64')
        p(f's_cbranch_scc1 L_kf{u}')
        p(f's_lshl_b32 s{sT1}, s{sH}, 6')
        p(f's_add_u32 s{sT1}, s{sT1}, s{sPrev}')
        p(f's_lshl_b32 s{sT1}, s{sT1}, 2')
        p(f's_add_u32 s{sT1}, s{sT1}, {WS_FKV}')
        p('s_mov_b64 exec, 1')
        p('v_mov_b32 v9, 1')
        p(f'buffer_store_dword v9, off, {srd(S_WS)}, s{sT1} sc1')
        p('s_mov_b64 exec, -1')
        p.label(f'L_kf{u}')
    p(f's_sub_u32 s{sSeg}, s{sTeam}, 1')
    p(f's_mov_b32 s{sPrev}, 64')
    p(f's_mov_b32 s{sBuf}, 0')
    hdma()
    tl(p, 3, 9)
    vH = 3
    p.label('L_kv_loop')
    p('s_waitcnt vmcnt(0)')
    p('s_barrier')
    flag()
    p(f'v_add_u32 v{vH}, s{sBuf}, v{vL16}')
    p(f's_mov_b32 s{sPrev}, s{sSeg}')
    p(f's_add_u32 s{sSeg}, s{sSeg}, {NKV}')
    p(f's_xor_b32 s{sBuf}, s{sBuf}, 32768')
    p(f's_cmp_ge_u32 s{sSeg}, 64')
    p('s_cbranch_scc1 L_kv_nodma')
    hdma()
    p.label('L_kv_nodma')
    HFR = [16, 24, 32]
    KA = [[48, 52], [56, 60]]; VA = [[64, 68], [72, 76]]
    def hrd(ks):
        s_ = HFR[ks % 3]
        return [f'ds_read_b128 {v(s_,4)}, v{vH} offset:{ks*1024}', f'ds_read_b128 {v(s_+4,4)}, v{vH} offset:{16384+ks*1024}']
    for x in hrd(0) + hrd(1): p(x)
    for ks in range(16):
        if ks + 2 < 16:
            for x in hrd(ks + 2): p(x)
            p('s_waitcnt lgkmcnt(4)')
        else:
            p(f's_waitcnt lgkmcnt({2 if ks == 14 else 0})')
        s_ = HFR[ks % 3]
        for rt in range(2):
            for t in range(2):
                p(M32(KA[rt][t], 256 + (t * 16 + ks) * 4, s_ + 4 * rt, '0' if ks == 0 else KA[rt][t]))
        for rt in range(2):
            for d in range(2):
                p(M32(VA[rt][d], s_ + 4 * rt, 256 + 128 + (d * 16 + ks) * 4, '0' if ks == 0 else VA[rt][d]))
    p(f's_lshl_b32 s{sO}, s{sPrev}, 5')
    p(f's_add_u32 s{sO}, s{sO}, s{sH}')
    p(f's_lshl_b32 s{sO}, s{sO}, 14')
    p(f's_lshl_b32 s{sT1}, s{sW}, 10')
    p(f's_add_u32 s{sT2}, s{sO}, s{sT1}')
    p(f's_add_u32 s{sT3}, s{sT2}, 4096')
    p(f's_add_u32 s{sT4}, s{sT2}, s{sT1}')
    p(f's_add_u32 s{sT4}, s{sT4}, 8192')
    O = 80
    for rt in range(2):
        for t in range(2):
            p(f'v_cvt_pk_bf16_f32 v{O+4*rt+2*t}, v{KA[rt][t]}, v{KA[rt][t]+1}')
            p(f'v_cvt_pk_bf16_f32 v{O+4*rt+2*t+1}, v{KA[rt][t]+2}, v{KA[rt][t]+3}')
        p(f'buffer_store_dwordx4 {v(O+4*rt,4)}, v{vL16}, {srd(S_WS)}, s{sT2 if rt == 0 else sT3} offen sc1')
    for d in range(2):
        for rt in range(2):
            p(f'v_cvt_pk_bf16_f32 v{O+8+4*d+2*rt}, v{VA[rt][d]}, v{VA[rt][d]+1}')
            p(f'v_cvt_pk_bf16_f32 v{O+8+4*d+2*rt+1}, v{VA[rt][d]+2}, v{VA[rt][d]+3}')
        p(f'buffer_store_dwordx4 {v(O+8+4*d,4)}, v{vL16}, {srd(S_WS)}, s{sT4} offen offset:{d*1024} sc1')
    p(f's_cmp_lt_u32 s{sSeg}, 64')
    p('s_cbranch_scc1 L_kv_loop')
    p('s_waitcnt vmcnt(0)')
    p('s_barrier')
    flag()
    tl(p, 5, 9)
    p('s_branch L_end')
```

```python
import sys
from common import *
import chain3, roles, post
NAME = 'adaLN_cond__memory_aug_recurrent_mem_tr__dense_activation_gelu__prompt'
FORCE_SLOW = int(os.environ.get('FORCE_SLOW', 0))
LIGHT = int(os.environ.get('LIGHT', 0))
PROF = int(os.environ.get('PROF', 0))
sG, sX, sId, sSpec, sLn = 69, 63, 68, 70, 71

def build():
    p = Prog()
    p('s_cmp_ge_u32 s2, 256')
    p('s_cbranch_scc1 L_end')
    if LIGHT: p('s_memrealtime s[92:93]')
    build_srd(p, S_WS, 128, WS_SIZE)
    build_srd(p, S_DBG, 120, 256)
    p('v_lshrrev_b32 v1, 6, v0')
    p(f's_mov_b32 s{sSpin}, 0')
    p(f'v_readfirstlane_b32 s{sW}, v1')
    p(f's_getreg_b32 s{sX}, hwreg(HW_REG_XCC_ID)')
    p(f's_and_b32 s{sX}, s{sX}, 7')
    p('v_mov_b32 v2, 0')
    p('s_waitcnt lgkmcnt(0)')
    p(f's_cmp_lg_u32 s{sW}, 0')
    p('s_cbranch_scc1 L_arr')
    p('s_mov_b64 exec, 0xff')
    for k in range(4): p(f'v_mov_b32 v{4+k}, 0')
    p('v_lshlrev_b32 v3, 4, v0')
    p(f's_lshl_b32 s{sT0}, s2, 7')
    p(f's_add_u32 s{sT0}, s{sT0}, {WS_FKV}')
    p(f'buffer_store_dwordx4 v[4:7], v3, {srd(S_WS)}, s{sT0} offen sc1')
    p('s_waitcnt vmcnt(0)')
    p('s_mov_b64 exec, -1')
    p('v_mov_b32 v127, 1')
    p('s_mov_b64 exec, 1')
    p(f's_lshl_b32 s{sT0}, s{sX}, 2')
    p(f'buffer_atomic_add v127, off, {srd(S_DBG)}, s{sT0} sc0')
    p('s_mov_b64 exec, -1')
    p.label('L_arr')
    p(f's_and_b32 s{sT3}, s2, 7')
    p(f's_lshr_b32 s{sId}, s2, 3')
    p(f's_mov_b32 s{sLn}, -1')
    p(f's_cmp_ge_u32 s{sT3}, 4')
    p('s_cbranch_scc1 L_p0_ln')
    p(f's_cmp_eq_u32 s{sT3}, 3')
    p('s_cbranch_scc1 L_p0_mod')
    p(f's_cmp_lg_u32 s{sT3}, 2')
    p('s_cbranch_scc1 L_p0_done')
    p(f's_cmp_ge_u32 s{sId}, 16')
    p('s_cbranch_scc1 L_p0_done')
    p(f's_add_u32 s{sId}, s{sId}, 32')
    p.label('L_p0_mod')
    roles.mod_task(p, sId)
    p('s_branch L_p0_done')
    p.label('L_p0_ln')
    p(f's_sub_u32 s{sT3}, s{sT3}, 4')
    p(f's_lshl_b32 s{sT3}, s{sT3}, 5')
    p(f's_add_u32 s{sId}, s{sId}, s{sT3}')
    roles.ln1_task(p, sId)
    p(f's_mov_b32 s{sLn}, s{sId}')
    p.label('L_p0_done')
    p('v_mov_b32 v2, 0')
    p(f's_cmp_lg_u32 s{sW}, 0')
    p('s_cbranch_scc1 L_rk')
    p('s_waitcnt vmcnt(0)')
    p('s_mov_b64 exec, 1')
    p('ds_write_b32 v2, v127')
    p('s_mov_b64 exec, -1')
    p('s_waitcnt lgkmcnt(0)')
    p.label('L_rk')
    p('s_barrier')
    p('ds_read_b32 v4, v2')
    p('s_waitcnt lgkmcnt(0)')
    p(f'v_readfirstlane_b32 s{sH}, v4')
    p('s_barrier')
    p(f's_mov_b32 s{sSpec}, 0')
    p(f's_mov_b32 s{sTeam}, s{sX}')
    tl(p, 1, 127)
    p(f's_cmp_ge_u32 s{sH}, 32')
    p('s_cbranch_scc1 L_decide')
    p(f's_cmp_gt_u32 s{sX}, {NKV}')
    p('s_cbranch_scc1 L_decide')
    p(f's_cmp_lg_u32 s{sX}, 0')
    p('s_cbranch_scc1 L_spec_kv')
    p(f's_mov_b32 s{sSpec}, 1')
    chain3.chain_pre(p)
    p('s_branch L_decide')
    p.label('L_spec_kv')
    p(f's_mov_b32 s{sSpec}, 2')
    roles.kv_pre(p)
    p.label('L_decide')
    p(f'v_mov_b32 v125, {LDS_BYTES - 16}')
    p(f's_cmp_lg_u32 s{sW}, 0')
    p('s_cbranch_scc1 L_dd')
    p('v_lshlrev_b32 v126, 2, v0')
    p('s_mov_b64 exec, 0xff')
    p.label('L_dl')
    p(f'buffer_load_dword v127, v126, {srd(S_DBG)}, 0 offen sc1')
    spin(p)
    p('s_waitcnt vmcnt(0)')
    p(f's_mov_b32 s{sT1}, 0')
    p(f's_mov_b32 s{sG}, s{sH}')
    for k in range(8):
        p(f'v_readlane_b32 s{sT0}, v127, {k}')
        p(f's_add_u32 s{sT1}, s{sT1}, s{sT0}')
        p(f's_cmp_gt_u32 s{sX}, {k}')
        p(f's_cselect_b32 s{sT0}, s{sT0}, 0')
        p(f's_add_u32 s{sG}, s{sG}, s{sT0}')
    p(f's_cmp_ge_u32 s{sT1}, 256')
    p('s_cbranch_scc1 L_dok')
    p('s_sleep 2')
    p('s_branch L_dl')
    p.label('L_dok')
    p('v_cmp_ne_u32 vcc, 32, v127')
    p('s_mov_b64 exec, -1')
    p(f's_cmp_lg_u32 vcc_lo, 0')
    p(f's_cselect_b32 s{sT0}, 1, {FORCE_SLOW}')
    p(f'v_mov_b32 v126, s{sT0}')
    p(f'v_mov_b32 v127, s{sG}')
    p('ds_write_b64 v125, v[126:127]')
    p(f's_cmp_eq_u32 s{sLn}, -1')
    p('s_cbranch_scc1 L_nolf')
    p(f's_lshl_b32 s{sT0}, s{sLn}, 2')
    p(f's_add_u32 s{sT0}, s{sT0}, {WS_FH}')
    p(f'buffer_store_dword v125, off, {srd(S_WS)}, s{sT0} sc1')
    p.label('L_nolf')
    p('s_waitcnt lgkmcnt(0)')
    p.label('L_dd')
    p('s_barrier')
    p('ds_read_b64 v[126:127], v125')
    p('s_waitcnt lgkmcnt(0)')
    p(f'v_readfirstlane_b32 s{sMode}, v126')
    p(f'v_readfirstlane_b32 s{sG}, v127')
    p(f's_cmp_eq_u32 s{sMode}, 0')
    p('s_cbranch_scc1 L_roles')
    p(f's_lshr_b32 s{sTeam}, s{sG}, 5')
    p(f's_and_b32 s{sH}, s{sG}, 31')
    p(f's_mov_b32 s{sSpec}, 0')
    p('s_waitcnt vmcnt(0)')
    p('s_barrier')
    p.label('L_roles')
    tl(p, 0, 127)
    p(f's_cmp_eq_u32 s{sTeam}, 0')
    p('s_cbranch_scc1 L_chain')
    p(f's_cmp_gt_u32 s{sTeam}, {NKV}')
    p('s_cbranch_scc1 L_postrole')
    p(f's_cmp_eq_u32 s{sSpec}, 2')
    p('s_cbranch_scc1 L_kv2')
    roles.kv_pre(p)
    p.label('L_kv2')
    roles.kv_role(p)
    p.label('L_postrole')
    H = post.post_setup(p)
    p(f's_cmp_lg_u32 s{sMode}, 0')
    p('s_cbranch_scc1 L_pi_s')
    post.post_init_rings(p, '')
    p('s_branch L_pi_d')
    p.label('L_pi_s')
    post.post_init_rings(p, 'sc1')
    p.label('L_pi_d')
    post.post_weights(p, H)
    p(f's_cmp_lg_u32 s{sMode}, 0')
    p('s_cbranch_scc1 L_pl_s')
    post.post_loop(p, '')
    p.label('L_pl_s')
    post.post_loop(p, 'sc1')
    p.label('L_chain')
    p(f's_cmp_eq_u32 s{sSpec}, 1')
    p('s_cbranch_scc1 L_chain2')
    chain3.chain_pre(p)
    p.label('L_chain2')
    chain3.chain_role(p, PROF, LIGHT)
    p.label('L_end')
    p('s_endpgm')
    return p

def emit(path):
    p = build()
    n = p.fix_hazards()
    ins = p.ins
    errs = []
    for m in 'fs':
        for w in range(4):
            t = f'w{w}{m}'
            errs += check_waits(make_trace(ins, f'L_step_{t}', taken=(f'L_paok_{t}', f'L_bgot_{t}')), t)
            errs += check_waits(make_trace(ins, f'L_step_{t}', taken=(f'L_paok_{t}', f'L_prok_{t}', f'L_bok1_{t}')), t)
        errs += check_waits(make_trace(ins, f'L_post_{m}', taken=(f'L_post_{m}', f'L_gok_a{m}', f'L_gok_b{m}')), 'post')
    errs += check_waits(make_trace(ins, 'L_kv_loop', taken=('L_kv_loop',)), 'kv')
    errs += check_waits(make_trace(ins, 'L_chain', stop=('L_step_w0f',)), 'chainpro')
    errs += check_waits(make_trace(ins, 'L_postrole', stop=('L_post_f',)), 'postpro')
    errs += check_waits(make_trace(ins, None, taken=('L_p0_mod','L_dok'), stop=('L_roles',)), 'pro')
    errs += check_waits(make_trace(ins, 'L_kv2', stop=('L_kv_loop',)), 'kvpro')
    errs += check_waits(make_trace(ins, 'L_p0_ln', stop=('L_decide',)), 'ln')
    for e in errs[:20]: print(e)
    body = '\n'.join(x.text for x in ins)
    hdr = open('cdna_kernels/' + NAME + '.s.ref').read().split('; Override launch')[0]
    txt = hdr + f'''; Generated by a Python generator (hand-designed persistent kernel: teams of 32 workgroups per XCD).
; @launch grid=(256,1,1) block=(256,1,1) lds={LDS_BYTES}
.amdgcn_target "amdgcn-amd-amdhsa--gfx950"
.text
.globl {NAME}_kernel
.p2align 8
.type {NAME}_kernel,@function
{NAME}_kernel:
{body}
.section .rodata,"a"
.p2align 6
.amdhsa_kernel {NAME}_kernel
  .amdhsa_next_free_vgpr 512
  .amdhsa_next_free_sgpr 102
  .amdhsa_accum_offset 256
  .amdhsa_group_segment_fixed_size 0
  .amdhsa_kernarg_size 136
  .amdhsa_user_sgpr_count 2
  .amdhsa_user_sgpr_kernarg_segment_ptr 1
  .amdhsa_system_sgpr_workgroup_id_x 1
.end_amdhsa_kernel
'''
    open(path, 'w').write(txt)
    print('instrs', len(ins), 'nops added', n, 'bytes', len(txt))

if __name__ == '__main__':
    emit(sys.argv[1] if len(sys.argv) > 1 else 'cdna_kernels/' + NAME + '.s')
```
